```python
import torch

def _softmax(x, axis=-1):
    return torch.softmax(x, dim=axis)
def _gelu(x):
    return torch.nn.functional.gelu(x, approximate="tanh")
def _silu(x):
    return torch.nn.functional.silu(x)
def _sigmoid(x):
    return torch.sigmoid(x)
def _layernorm(x, axis=-1, eps=1e-5):
    m = x.mean(dim=axis, keepdim=True)
    v = x.var(dim=axis, keepdim=True, unbiased=False)
    return (x - m) / torch.sqrt(v + eps)
def _scatter_add(tgt, idx, src, axis=0):
    return tgt.clone().index_add_(axis, idx, src)
def _segment_sum(src, seg, n):
    out = torch.zeros((n,) + src.shape[1:], dtype=src.dtype)
    return out.index_add_(0, seg, src)
def _pad(x, pw):
    flat = tuple(v for pair in reversed(pw) for v in pair)
    return torch.nn.functional.pad(x, flat)

kernel_name = 'sequential_preLN__ssm_conv_s4__glu_gated_bilinear__prompt'

def setup_inputs():

    _w = (lambda a: (lambda t: t.to(torch.bfloat16) if t.is_floating_point() else t)(torch.as_tensor(a)))
    def _A_setup():
        B, L, D, N = 1, 2048, 640, 128
        A_re = -(lambda _x: torch.exp(torch.as_tensor(_x)))((lambda *s: torch.randn(*s, dtype=torch.bfloat16) * 6.4)(D, N))
        A_im = torch.pi * (lambda *s: torch.randn(*s, dtype=torch.bfloat16) * 0.05)(D, N)
        B_re = (lambda *s: torch.randn(*s, dtype=torch.bfloat16) * 0.05)(D, N)
        B_im = (lambda *s: torch.randn(*s, dtype=torch.bfloat16) * 0.05)(D, N)
        C_re = (lambda *s: torch.randn(*s, dtype=torch.bfloat16) * 0.05)(D, N)
        C_im = (lambda *s: torch.randn(*s, dtype=torch.bfloat16) * 0.05)(D, N)
        log_dt = (lambda *s: torch.randn(*s, dtype=torch.bfloat16) * 0.05)(D) * 0.5 - 4.0
        Dskip = (lambda *s: torch.randn(*s, dtype=torch.bfloat16) * 0.05)(D)
        return {
            "u": _w((lambda *s: torch.randn(*s, dtype=torch.bfloat16) * 0.05)(B, L, D)),
            "A_re": _w(A_re),
            "A_im": _w(A_im),
            "B_re": _w(B_re),
            "B_im": _w(B_im),
            "C_re": _w(C_re),
            "C_im": _w(C_im),
            "log_dt": _w(log_dt),
            "Dskip": _w(Dskip),
        }
    _A_in = _A_setup()

    def _B_setup():
        B, S, D, F = 1, 2048, 640, 1728
        return {
            "x": _w((lambda *s: torch.randn(*s, dtype=torch.bfloat16) * 0.05)(B, S, D)),
            "w_gate": _w((lambda *s: torch.randn(*s, dtype=torch.bfloat16) * 0.4)(D, F) * (D ** -0.5)),
            "w_up": _w((lambda *s: torch.randn(*s, dtype=torch.bfloat16) * 0.4)(D, F) * (D ** -0.5)),
            "w_down": _w((lambda *s: torch.randn(*s, dtype=torch.bfloat16) * 0.4)(F, D) * (F ** -0.5)),
        }
    _B_in = _B_setup()

    return {
        "A_u": _A_in["u"],
        "A_A_re": _A_in["A_re"],
        "A_A_im": _A_in["A_im"],
        "A_B_re": _A_in["B_re"],
        "A_B_im": _A_in["B_im"],
        "A_C_re": _A_in["C_re"],
        "A_C_im": _A_in["C_im"],
        "A_log_dt": _A_in["log_dt"],
        "A_Dskip": _A_in["Dskip"],
        "B_x": _B_in["x"],
        "B_w_gate": _B_in["w_gate"],
        "B_w_up": _B_in["w_up"],
        "B_w_down": _B_in["w_down"],
    }

def reference(A_u, A_A_re, A_A_im, A_B_re, A_B_im, A_C_re, A_C_im, A_log_dt, A_Dskip, B_x, B_w_gate, B_w_up, B_w_down):
    def _A_ref(u, A_re, A_im, B_re, B_im, C_re, C_im, log_dt, Dskip):
        Bsz, L, D = u.shape
        dt = torch.exp(log_dt)[:, None]
        A = A_re + 1j * A_im
        Bc = B_re + 1j * B_im
        Cc = C_re + 1j * C_im
        logdA = dt * A
        dB = dt * Bc
        l = (lambda x, dt: x.to(dt))(torch.arange(L), A_re.dtype)
        P = torch.exp(logdA[:, :, None] * l[None, None, :])
        K = torch.einsum("dn,dnl,dn->dl", Cc, P, dB).real
        L2 = 2 * L
        Kp = _pad(K, ((0, 0), (0, L)))
        up = (lambda x, *d: x.permute(*d))(u, 0, 2, 1)
        up = _pad(up, ((0, 0), (0, 0), (0, L)))
        Kf = (lambda x, axes=(-2,-1): torch.fft.rfft2(x.float(), dim=axes))(Kp[:, None, :], axes=(-2, -1))
        Uf = (lambda x, axes=(-2,-1): torch.fft.rfft2(x.float(), dim=axes))(up[:, :, None, :], axes=(-2, -1))
        Yf = Uf * Kf[None, :, :, :]
        y = (lambda x, s, axes=(-2,-1): torch.fft.irfft2(x, s=s, dim=axes).to(torch.bfloat16))(Yf, (1, L2), axes=(-2, -1))[:, :, 0, :L]
        y = (lambda x, *d: x.permute(*d))(y, 0, 2, 1) + u * Dskip[None, None, :]
        return y

    def _B_ref(x, w_gate, w_up, w_down):
        g = torch.einsum("bsd,df->bsf", x, w_gate)
        u = torch.einsum("bsd,df->bsf", x, w_up)
        h = g * u
        return torch.einsum("bsf,fd->bsd", h, w_down)

    x = A_u
    h = x + _A_ref(_layernorm(x, axis=-1), A_A_re, A_A_im, A_B_re, A_B_im, A_C_re, A_C_im, A_log_dt, A_Dskip)
    h2 = h + _B_ref(_layernorm(h, axis=-1), B_w_gate, B_w_up, B_w_down)
    return h2
```

```python
KN = "sequential_preLN__ssm_conv_s4__glu_gated_bilinear__prompt"
ARG = dict(x=0, A_re=8, A_im=16, B_re=24, B_im=32, C_re=40, C_im=48, log_dt=56, Dskip=64, Bx=72,
           Wg=80, Wu=88, Wd=96, out=104, dbg=112, ws=120)

class Kern:
    def __init__(s, name, grid, block, lds, vgpr=256, sgpr=102, accum=None):
        s.name, s.grid, s.block, s.lds = name, grid, block, lds
        s.vgpr, s.sgpr, s.accum = vgpr, sgpr, accum
        s.L = []
        s._n = 0
    def __call__(s, txt):
        for ln in txt.strip("\n").split("\n"):
            ln = ln.strip()
            if not ln: continue
            s.L.append(ln if ln.endswith(":") else "    " + ln)
    def lab(s, base="L"):
        s._n += 1
        return "%s_%s_%d" % (base, s.name, s._n)
    def srd(s, d, b, nbytes):
        s(f"s_mov_b32 s{d}, s{b}\ns_and_b32 s{d+1}, s{b+1}, 0xffff\ns_mov_b32 s{d+2}, {nbytes}\ns_mov_b32 s{d+3}, 0x20000")
    def code_prefetch(s, end_label, vtmp=1, vdst=9, sp=30, stride=6):
        L = s.lab("pc")
        s(f"s_getpc_b64 s[{sp}:{sp+1}]")
        s(f"{L}:")
        s(f"v_lshlrev_b32 v{vtmp}, {stride}, v0")
        s(f"v_min_u32 v{vtmp}, {end_label}-{L}, v{vtmp}")
        s(f"global_load_dword v{vdst}, v{vtmp}, s[{sp}:{sp+1}]")
    def text(s):
        return (f".globl {s.name}\n.p2align 8\n.type {s.name},@function\n{s.name}:\n" + "\n".join(s.L) + "\n")
    def desc(s):
        acc = s.accum if s.accum is not None else min(256, (s.vgpr + 3) // 4 * 4)
        return (f".amdhsa_kernel {s.name}\n  .amdhsa_next_free_vgpr {s.vgpr}\n  .amdhsa_next_free_sgpr {s.sgpr}\n"
                f"  .amdhsa_accum_offset {acc}\n  .amdhsa_group_segment_fixed_size 0\n  .amdhsa_kernarg_size 128\n"
                f"  .amdhsa_user_sgpr_count 2\n  .amdhsa_user_sgpr_kernarg_segment_ptr 1\n"
                f"  .amdhsa_system_sgpr_workgroup_id_x 1\n  .amdhsa_float_denorm_mode_32 3\n.end_amdhsa_kernel\n")

def build(kerns, order=None, header=""):
    order = order or kerns
    o = header
    for k in order:
        o += f"; @launch kernel={k.name} grid=({k.grid},1,1) block=({k.block},1,1) lds={k.lds}\n"
    o += '.amdgcn_target "amdgcn-amd-amdhsa--gfx950"\n.text\n'
    for k in kerns: o += k.text()
    o += '.section .rodata,"a"\n'
    for k in kerns: o += ".p2align 6\n" + k.desc()
    return o
```

```python
from asmlib import *
from layout import *
from gen_k3 import vr, srd_off, hexf
import math
K1_LDS = 34816
def stamp(k, slot, srd="s[40:43]"):
    k("s_memrealtime s[44:45]\ns_memtime s[48:49]\ns_waitcnt lgkmcnt(0)\nv_mov_b32 v126, s44\nv_mov_b32 v125, s48")
    k(f"buffer_store_dword v126, v127, {srd}, 0 offen offset:{slot*4}")
    k(f"buffer_store_dword v125, v127, {srd}, 0 offen offset:{slot*4+32}")
def stamp_setup(k, base, wave_sreg):
    k(f"s_add_u32 s40, s4, {base}\ns_addc_u32 s41, s5, 0\ns_and_b32 s41, s41, 0xffff\ns_mov_b32 s42, 0x200000\ns_mov_b32 s43, 0x20000")
    k(f"s_lshl_b32 s46, s2, 10\ns_lshl_b32 s47, {wave_sreg}, 6\ns_add_u32 s46, s46, s47\nv_mov_b32 v127, s46")

def ln_role(k, diag, PFM=1):
    PITCH = 1344; ARR = 8 * PITCH + 32
    k(f"s_load_dwordx2 s[6:7], s[0:1], {ARG['x']}")
    k(f"s_load_dwordx4 s[52:55], s[0:1], {ARG['Wg']}\ns_load_dwordx2 s[56:57], s[0:1], {ARG['Wd']}")
    k("v_lshrrev_b32 v2, 5, v0\nv_and_b32 v3, 31, v0\nv_lshlrev_b32 v4, 4, v3")
    k("v_mul_u32_u24 v5, 1280, v2\nv_add_u32 v5, v5, v4")
    k("v_cmp_gt_u32 vcc, 16, v3\nv_add_u32 v6, 1024, v5\nv_mov_b32 v7, 0x7fffffff\ns_mul_i32 s26, s2, 10240\nv_cndmask_b32 v6, v7, v6, vcc")
    k("s_waitcnt lgkmcnt(0)")
    k.srd(8, 6, 2621440)
    k("buffer_load_dwordx4 v[16:19], v5, s[8:11], s26 offen\nbuffer_load_dwordx4 v[20:23], v5, s[8:11], s26 offen offset:512\nbuffer_load_dwordx4 v[24:27], v6, s[8:11], s26 offen")
    k("s_cmp_lt_u32 s2, 68\ns_cselect_b32 s12, s52, s54\ns_cselect_b32 s13, s53, s55\ns_cselect_b32 s27, 0, 68")
    k("s_cmp_lt_u32 s2, 136\ns_cselect_b32 s12, s12, s56\ns_cselect_b32 s13, s13, s57\ns_cselect_b32 s27, s27, 136")
    k("s_and_b32 s13, s13, 0xffff\ns_mov_b32 s14, 2211840\ns_mov_b32 s15, 0x20000\ns_sub_u32 s27, s2, s27\ns_lshl_b32 s27, s27, 15\nv_lshlrev_b32 v8, 7, v0")
    if PFM == 1: k("buffer_load_dword v9, v8, s[12:15], s27 offen")
    k("s_mov_b32 s33, s27")
    if diag:
        stamp_setup(k, 0x3600000, "s25"); stamp(k, 0)
    srd_off(k, 16, WS_UX, 160 * 32768)
    k(f"v_mul_u32_u24 v10, {PITCH}, v2\nv_add_u32 v10, v10, v4")
    k(f"v_add_u32 v11, 1024, v10\nv_mov_b32 v7, {2*ARR}\nv_cndmask_b32 v11, v7, v11, vcc")
    k("v_mov_b32 v12, 0\nv_mov_b32 v13, 0\nv_mov_b32 v14, 0x3f803f80")
    k(f"s_waitcnt vmcnt({(2 if diag else 0) + (PFM == 1)})")
    if diag: stamp(k, 1)
    if PFM == 2: k("buffer_load_dword v9, v8, s[12:15], s33 offen")
    k(f"ds_write_b128 v10, v[16:19] offset:{ARR}\nds_write_b128 v10, v[20:23] offset:{ARR+512}\nds_write_b128 v11, v[24:27] offset:{ARR}")
    for r in range(16, 28):
        k(f"v_dot2c_f32_bf16 v12, v{r}, v14\nv_dot2c_f32_bf16 v13, v{r}, v{r}")
    k("s_nop 2")
    for sh in (1, 2, 4, 8):
        k(f"v_add_f32_dpp v12, v12, v12 row_ror:{sh} row_mask:0xf bank_mask:0xf\nv_add_f32_dpp v13, v13, v13 row_ror:{sh} row_mask:0xf bank_mask:0xf\ns_nop 0")
    k("v_mov_b32 v28, v12\nv_mov_b32 v29, v13\ns_nop 1\nv_permlane16_swap_b32 v28, v12\nv_permlane16_swap_b32 v29, v13\ns_nop 1")
    k("v_add_f32 v12, v12, v28\nv_add_f32 v13, v13, v29")
    k(f"v_mul_f32 v12, {hexf(1.0/640)}, v12\nv_mul_f32 v13, {hexf(1.0/640)}, v13\nv_fma_f32 v13, -v12, v12, v13")
    k(f"v_max_f32 v13, 0, v13\nv_add_f32 v13, {hexf(1e-5)}, v13\nv_rsq_f32 v28, v13\ns_nop 0")
    k("v_mul_f32 v30, -v12, v28\nv_mov_b32 v29, v28\nv_mov_b32 v31, v30")
    for r in range(12):
        k(f"v_lshlrev_b32 v32, 16, v{16+r}\nv_and_b32 v33, 0xffff0000, v{16+r}")
        k(f"v_pk_fma_f32 v[32:33], v[32:33], v[28:29], v[30:31]\nv_cvt_pk_bf16_f32 v{36+r}, v32, v33")
        if r == 3: k("ds_write_b128 v10, v[36:39]")
        if r == 7: k("ds_write_b128 v10, v[40:43] offset:512")
    k("ds_write_b128 v11, v[44:47]")
    k(f"v_and_b32 v2, 1, v1\nv_mul_u32_u24 v2, {ARR}, v2\nv_lshrrev_b32 v3, 2, v1\nv_and_b32 v3, 3, v3\nv_mul_u32_u24 v3, {PITCH}, v3\nv_add_u32 v2, v2, v3")
    k("v_lshrrev_b32 v3, 4, v1\nv_lshlrev_b32 v3, 4, v3\nv_and_b32 v4, 2, v1\nv_lshl_add_u32 v3, v4, 2, v3\ns_mul_i32 s27, s25, 320\nv_add3_u32 v2, v2, v3, s27")
    k("v_lshrrev_b32 v3, 3, v1\nv_lshlrev_b32 v3, 15, v3\nv_and_b32 v4, 7, v1\nv_lshl_add_u32 v3, v4, 4, v3")
    k(f"s_mul_i32 s27, s25, {40*32768}\ns_lshl_b32 s28, s2, 7\ns_add_u32 s27, s27, s28")
    k("s_waitcnt lgkmcnt(0)")
    if diag: stamp(k, 2)
    k("s_barrier")
    for it in range(5):
        k(f"ds_read_b64_tr_b16 {vr(48+4*it,2)}, v2 offset:{64*it}\nds_read_b64_tr_b16 {vr(50+4*it,2)}, v2 offset:{64*it+4*PITCH}")
    for it in range(5):
        k(f"s_waitcnt lgkmcnt({2*(4-it)})\nbuffer_store_dwordx4 {vr(48+4*it,4)}, v3, s[16:19], s27 offen sc1\ns_add_u32 s27, s27, {8*32768}")
    if PFM == 3: k("buffer_load_dword v9, v8, s[12:15], s33 offen")
    if diag:
        stamp(k, 3); k("s_waitcnt vmcnt(0)"); stamp(k, 4)
    k("s_endpgm")

def cmul(k, d, z, m, t):
    k(f"v_pk_mul_f32 {vr(t,2)}, {vr(z,2)}, {vr(m,2)} op_sel_hi:[0,1]")
    k(f"v_pk_fma_f32 {vr(d,2)}, {vr(z,2)}, {vr(m,2)}, {vr(t,2)} op_sel:[1,1,0] op_sel_hi:[1,0,1] neg_lo:[0,1,0]")

def kgen_role(k, diag):
    RP = 272; REG = 8704
    k(f"s_load_dwordx8 s[52:59], s[0:1], {ARG['A_re']}\ns_load_dwordx4 s[60:63], s[0:1], {ARG['C_re']}\ns_load_dwordx2 s[6:7], s[0:1], {ARG['log_dt']}")
    k("s_sub_u32 s20, s2, 256\ns_lshl_b32 s20, s20, 1\ns_lshr_b32 s21, s25, 1\ns_add_u32 s20, s20, s21\ns_and_b32 s21, s25, 1")
    k("s_lshl_b32 s22, s20, 8\ns_lshl_b32 s23, s21, 7\ns_add_u32 s22, s22, s23\nv_lshl_add_u32 v2, v1, 1, s22")
    k("s_lshr_b32 s23, s20, 1\ns_lshl_b32 s23, s23, 2")
    k("s_waitcnt lgkmcnt(0)")
    for i in range(6):
        k(f"global_load_ushort v{10+i}, v2, s[{52+2*i}:{53+2*i}]")
    k("s_load_dword s24, s[6:7], s23")
    if diag:
        stamp_setup(k, 0x3600000, "s25"); stamp(k, 0)
    k(f"s_mul_i32 s27, s20, {2*KROWB}\ns_add_u32 s27, s27, {WS_K}")
    srd_off(k, 16, "s27", 2 * KROWB)
    k(f"s_mul_i32 s26, s25, {REG}\ns_mov_b32 m0, s26")
    k(f"v_and_b32 v3, 31, v1\nv_lshrrev_b32 v4, 5, v1\nv_mul_u32_u24 v5, {RP}, v3\nv_lshl_add_u32 v5, v4, 4, v5\nv_add_u32 v5, s26, v5")
    k("s_waitcnt lgkmcnt(0)")
    k("s_and_b32 s23, s20, 1\ns_lshl_b32 s23, s23, 4\ns_lshr_b32 s24, s24, s23\ns_lshl_b32 s24, s24, 16")
    k(f"v_mov_b32 v6, s24\nv_mul_f32 v6, {hexf(math.log2(math.e))}, v6\nv_exp_f32 v6, v6\ns_nop 0\nv_cvt_pk_bf16_f32 v6, v6, v6\nv_and_b32 v6, 0xffff0000, v6")
    k(f"s_waitcnt vmcnt({2 if diag else 0})")
    if diag: stamp(k, 1)
    for i in range(6): k(f"v_lshlrev_b32 v{10+i}, 16, v{10+i}")
    E1, E2, E4, E8, E256, Wc, Bc, Z, T, O = 20, 22, 24, 26, 28, 30, 32, 34, 36, 38
    k(f"v_mul_f32 v10, v6, v10\nv_mul_f32 v11, v6, v11\nv_mul_f32 v10, {hexf(math.log2(math.e))}, v10\nv_mul_f32 v11, {hexf(1/(2*math.pi))}, v11")
    k(f"v_mul_f32 v16, 0x43800000, v10\nv_mul_f32 v17, 0x43800000, v11\nv_fract_f32 v11, v11\nv_fract_f32 v17, v17")
    k(f"v_exp_f32 v10, v10\nv_cos_f32 v{E1}, v11\nv_sin_f32 v{E1+1}, v11\nv_exp_f32 v16, v16\nv_cos_f32 v{E256}, v17\nv_sin_f32 v{E256+1}, v17")
    k(f"v_mul_f32 v{E1}, v10, v{E1}\nv_mul_f32 v{E1+1}, v10, v{E1+1}\nv_mul_f32 v{E256}, v16, v{E256}\nv_mul_f32 v{E256+1}, v16, v{E256+1}")
    cmul(k, E2, E1, E1, T); cmul(k, E4, E2, E2, T); cmul(k, E8, E4, E4, T)
    k(f"v_mov_b32 v{O}, 0x3f80\nds_write_addtid_b32 v{O}")
    k(f"v_cvt_pk_bf16_f32 v{O+1}, v{E8}, -v{E8+1}\nds_write_addtid_b32 v{O+1} offset:{RP}")
    src = E8
    for j in range(2, 32):
        cmul(k, Z, src, E8, T); src = Z
        o = O + (j & 1)
        k(f"v_cvt_pk_bf16_f32 v{o}, v{Z}, -v{Z+1}\nds_write_addtid_b32 v{o} offset:{j*RP}")
    QF = 64
    for s in range(8): k(f"ds_read_b128 {vr(QF+4*s,4)}, v5 offset:{32*s}")
    cmul(k, Wc, 14, 12, T)
    k(f"v_mul_f32 v{Wc}, v6, v{Wc}\nv_mul_f32 v{Wc+1}, v6, v{Wc+1}")
    cnt = [0]
    def put(z, rows):
        o = O + (cnt[0] & 1); cnt[0] += 1
        k(f"v_cvt_pk_bf16_f32 v{o}, v{z}, v{z+1}")
        for r in rows: k(f"ds_write_addtid_b32 v{o} offset:{r*RP}")
    put(Wc, [0]); src = Wc
    for j in range(1, 8):
        cmul(k, Z, src, E1, T); src = Z; put(Z, [j])
    cmul(k, Bc, Wc, E256, T); put(Bc, [8]); src = Bc
    for rows in ([9], [10, 12], [13], [14]):
        cmul(k, Z, src, E2, T); src = Z; put(Z, rows)
    for r0, r1, r2 in (([16], [17, 20], [21]), ([18], [19, 22], [23])):
        cmul(k, Bc, Bc, E256, T); put(Bc, r0)
        cmul(k, Z, Bc, E4, T); put(Z, r1)
        cmul(k, Z, Z, E4, T); put(Z, r2)
    for r in (24, 25, 28, 29, 30):
        cmul(k, Bc, Bc, E256, T); put(Bc, [r])
    PF = 96 - 64 + 64
    ACC = 44
    PF = [96, 100, 104, 108, 112, 116, 120, 10]
    for s in range(8): k(f"ds_read_b128 {vr(PF[s],4)}, v5 offset:{32*s}")
    for s in range(8):
        k(f"s_waitcnt lgkmcnt({7-s})")
        c = "0" if s == 0 else vr(ACC, 16)
        k(f"v_mfma_f32_32x32x16_bf16 {vr(ACC,16)}, {vr(PF[s],4)}, {vr(QF+4*s,4)}, {c}")
    if diag: stamp(k, 2)
    k("v_lshlrev_b32 v7, 4, v1\ns_and_b32 s28, s25, 2\ns_mul_i32 s28, s28, " + str(REG))
    k(f"s_add_u32 s29, s28, {REG}\nv_add_u32 v8, s29, v7\ns_cmp_eq_u32 s21, 0\ns_nop 7\ns_cbranch_scc1 KG_EVEN")
    for i in range(4): k(f"ds_write_b128 v8, {vr(ACC+4*i,4)} offset:{i*1024}")
    k("s_waitcnt lgkmcnt(0)\ns_barrier\ns_branch KG_JOIN")
    k("KG_EVEN:")
    k("s_barrier")
    for i in range(4): k(f"ds_read_b128 {vr(QF+4*i,4)}, v8 offset:{i*1024}")
    k("v_lshlrev_b32 v9, 4, v3\nv_lshlrev_b32 v10, 3, v4\nv_add_u32 v10, v9, v10\ns_add_u32 s29, s28, " + str(4088 - 1536) + "\nv_sub_u32 v10, s29, v10")
    k("v_lshlrev_b32 v11, 10, v4\nv_add_u32 v11, v9, v11\ns_add_u32 s29, s28, " + str(2040 - 512) + "\nv_sub_u32 v11, s29, v11")
    k("v_and_b32 v12, 1, v3\nv_lshlrev_b32 v12, 1, v12\nv_add_u32 v12, v11, v12\nv_subrev_u32 v12, 2, v12")
    k("v_cmp_eq_u32 vcc, 32, v1\nv_mov_b32 v13, s28\nv_add_u32 v14, 4224, v13\nv_mov_b32 v16, 0\nv_cndmask_b32 v13, v14, v13, vcc")
    k("v_mov_b32 v17, 0\nv_and_b32 v14, 7, v1\nv_lshlrev_b32 v14, 3, v14\nv_add_u32 v14, s28, v14")
    k("v_cmp_eq_u32 vcc, 0, v4\ns_waitcnt lgkmcnt(0)")
    for i in range(8): k(f"v_pk_add_f32 {vr(ACC+2*i,2)}, {vr(ACC+2*i,2)}, {vr(QF+2*i,2)}")
    a = lambda i: f"v{ACC+i}"
    k("ds_write_b64 v14, v[16:17] offset:4096")
    for cp in range(2):
        k(f"v_cvt_pk_bf16_f32 v{20+2*cp}, {a(12+cp)}, {a(12+cp)}\nv_mov_b32 v{21+2*cp}, v{20+2*cp}")
        k(f"ds_write_b64 v11, {vr(20+2*cp,2)} offset:{512-512*cp}\nds_write_b64 v11, {vr(20+2*cp,2)} offset:{512-512*cp+8}")
    for cp in range(2):
        k(f"ds_write_b16 v12, v{20+2*cp} offset:{512-512*cp}")
    k(f"v_cvt_pk_bf16_f32 v24, {a(14)}, {a(14)}\nv_mov_b32 v25, v24\nds_write_b64 v13, v[24:25]")
    for c in range(2):
        k(f"v_cndmask_b32 v26, {a(9+2*c)}, {a(8+2*c)}, vcc")
        k(f"v_cvt_pk_bf16_f32 v{28+2*c}, {a(9+2*c)}, v26\nv_cvt_pk_bf16_f32 v{29+2*c}, {a(8+2*c)}, {a(8+2*c)}")
        k(f"ds_write_b64 v10, {vr(28+2*c,2)} offset:{1536-2*(512+256*c)}")
    k(f"v_cvt_pk_bf16_f32 v32, {a(6)}, {a(5)}\nv_cvt_pk_bf16_f32 v33, {a(4)}, {a(4)}\nds_write_b64 v10, v[32:33] offset:{1536-512}")
    k(f"v_cvt_pk_bf16_f32 v34, {a(3)}, {a(2)}\nv_cvt_pk_bf16_f32 v35, {a(1)}, {a(0)}\nds_write_b64 v10, v[34:35] offset:1536")
    k("s_waitcnt lgkmcnt(0)")
    k("KG_JOIN:")
    k("s_barrier")
    k("s_lshl_b32 s29, s21, 11\ns_add_u32 s30, s29, s28\nv_add_u32 v8, s30, v7")
    for i in range(2):
        k(f"ds_read_b128 {vr(64+8*i,4)}, v8 offset:{1024*i}\nds_read_b32 v{68+8*i}, v8 offset:{1024*i+16}")
    k(f"v_mov_b32 v20, 0\nv_mov_b32 v21, 0\nv_mov_b32 v22, 0\nv_mov_b32 v23, 0\ns_add_u32 s30, s29, {KROWB}")
    k(f"v_cmp_gt_u32 vcc, 8, v1\nv_mov_b32 v9, 0x7fffffff\ns_mul_i32 s31, s21, {KROWB}\ns_add_u32 s31, s31, 4096\nv_cndmask_b32 v9, v9, v7, vcc")
    k("buffer_store_dwordx4 v[20:23], v9, s[16:19], s31 offen sc1")
    for i in range(2):
        k(f"s_waitcnt lgkmcnt({2-2*i})")
        b = 64 + 8 * i
        k(f"buffer_store_dwordx4 {vr(b,4)}, v7, s[16:19], s29 offen offset:{1024*i} sc1")
        for j in range(4): k(f"v_alignbit_b32 v{80+4*i+j}, v{b+j+1}, v{b+j}, 16")
        k(f"buffer_store_dwordx4 {vr(80+4*i,4)}, v7, s[16:19], s30 offen offset:{1024*i} sc1")
    if diag:
        stamp(k, 3); k("s_waitcnt vmcnt(0)"); stamp(k, 4)
    k("s_endpgm")

def gen_k1(diag=False, name="prep_kernel", PFM=1):
    k = Kern(name, 576, 256, K1_LDS, vgpr=128, sgpr=72)
    k("s_cmp_ge_u32 s2, 576\ns_cbranch_scc1 K1_END")
    k(f"s_load_dwordx2 s[4:5], s[0:1], {ARG['ws']}")
    k.code_prefetch("K1_END", vdst=124)
    k("v_readfirstlane_b32 s25, v0\nv_and_b32 v1, 63, v0")
    k("s_lshr_b32 s25, s25, 6")
    k("s_cmp_ge_u32 s2, 256\ns_cbranch_scc1 K1_KGEN")
    ln_role(k, diag, PFM)
    k("K1_KGEN:")
    kgen_role(k, diag)
    k("K1_END:")
    k("s_endpgm")
    return k

if __name__ == "__main__":
    for pfm in range(4): open("k1_%d.s" % pfm, "w").write(build([gen_k1(diag=True, PFM=pfm)]))
```

```python
from asmlib import *
from layout import *
from gen_k3 import stamp, stamp_setup, vr, srd_off, hexf
KC_P = 4160; KC_CH = 4 * KC_P; UXB = 4 * KC_CH; UX_P = 4624; K2_LDS = UXB + 8 * UX_P

def conv_body(k, diag=False):
    ACC = 16; KF = [48, 112]; UF = [80, 144]
    vKa, vUa = 2, 3
    k("s_lshl_b32 s26, s2, 2\ns_add_u32 s26, s26, s25")
    k("s_lshr_b32 s27, s26, 1\ns_lshl_b32 s27, s27, 2\ns_load_dword s28, s[6:7], s27")
    k(f"s_lshl_b32 s27, s2, 15\ns_add_u32 s27, s27, {WS_UX}")
    srd_off(k, 8, "s27", 32768)
    k(f"s_mul_i32 s27, s26, {2*KROWB}\ns_add_u32 s27, s27, {WS_K}")
    srd_off(k, 12, "s27", 2 * KROWB)
    k("v_lshlrev_b32 v4, 4, v0")
    for i in range(8):
        k(f"s_mov_b32 s29, {i*4096}\nbuffer_load_dwordx4 {vr(176+4*i,4)}, v4, s[8:11], s29 offen")
    k("v_lshlrev_b32 v5, 4, v1")
    k(f"s_mul_i32 s30, s25, {KC_CH}")
    for c in range(4):
        src = (c & 1) * KROWB + (c >> 1) * 4
        k(f"s_add_u32 m0, s30, {c*KC_P}\ns_mov_b32 s29, {src}")
        for j in range(4):
            k(f"buffer_load_dwordx4 v5, s[12:15], s29 offen offset:{j*1024} lds")
    srd_off(k, 16, WS_HT, 2621440)
    k(f"s_mul_i32 s31, s25, {UX_P}\ns_add_u32 s31, s31, {UXB}")
    k("v_add_u32 v6, s31, v5")
    k(f"v_subrev_u32 v7, 32, v1\nv_lshrrev_b32 v8, 1, v7\nv_mul_u32_u24 v8, {KC_P}, v8\nv_and_b32 v7, 1, v7\nv_lshl_add_u32 v8, v7, 4, v8")
    k("s_add_u32 s29, s30, 4096\nv_add_u32 v8, s29, v8\nv_mov_b32 v7, s31")
    k("v_cmp_gt_u32 vcc, 30, v1\ns_nop 1\nv_cndmask_b32 v6, v7, v6, vcc")
    k("v_lshrrev_b32 v7, 3, v1\nv_cmp_eq_u32 vcc, 4, v7\ns_nop 1\nv_cndmask_b32 v6, v6, v8, vcc")
    for r in range(ACC, ACC + 32): k(f"v_mov_b32 v{r}, 0")
    k(f"ds_write_b128 v6, {vr(ACC,4)}")
    k(f"v_and_b32 v7, 7, v0\nv_mul_u32_u24 v7, {UX_P}, v7\nv_lshrrev_b32 v8, 3, v0\nv_lshl_add_u32 v7, v8, 4, v7\nv_add_u32 v7, {UXB+480}, v7")
    k("v_and_b32 v8, 15, v1\nv_lshrrev_b32 v9, 4, v1")
    k(f"v_sub_u32 v10, 3, v8\nv_and_b32 v10, 3, v10\nv_mul_u32_u24 v10, {KC_P}, v10")
    k("v_lshrrev_b32 v11, 2, v8\nv_lshlrev_b32 v11, 3, v11\nv_sub_u32 v10, v10, v11\nv_lshlrev_b32 v11, 4, v9\nv_sub_u32 v10, v10, v11")
    k(f"s_add_u32 s29, s30, {4104-3584}\nv_add_u32 v{vKa}, s29, v10")
    k(f"v_lshlrev_b32 v10, 5, v8\nv_sub_u32 v10, v10, v11\ns_add_u32 s29, s31, 496\nv_add_u32 v{vUa}, s29, v10")
    for i in range(8):
        k(f"s_waitcnt vmcnt({16+7-i})\nds_write_b128 v7, {vr(176+4*i,4)} offset:{i*512}")
    k("s_waitcnt vmcnt(0) lgkmcnt(0)\ns_barrier")
    if diag: stamp(k, 1)
    def reads(s):
        r = []
        for x in range(8):
            r.append(f"ds_read_b128 {vr(UF[s]+4*x,4)}, v{vUa} offset:{512*x}")
            r.append(f"ds_read_b64 {vr(KF[s]+4*x,2)}, v{vKa} offset:{(7-x)*512}")
            r.append(f"ds_read_b64 {vr(KF[s]+4*x+2,2)}, v{vKa} offset:{(7-x)*512+8}")
        r.append(f"v_subrev_u32 v{vKa}, 64, v{vKa}\nv_subrev_u32 v{vUa}, 64, v{vUa}")
        return r
    def residue(ms, rd, tail=None):
        rd = list(rd)
        pairs = [(sg, be) for sg in range(8) for be in range(8 - sg)]
        for n, (sg, be) in enumerate(pairs):
            a = ACC + 4 * (sg + be)
            if n == 35 and tail: k(tail)
            k(f"v_mfma_f32_16x16x32_bf16 {vr(a,4)}, {vr(KF[ms]+4*sg,4)}, {vr(UF[ms]+4*be,4)}, {vr(a,4)}")
            if rd: k(rd.pop(0))
        assert not rd
    for r in reads(0): k(r)
    k("s_mov_b32 s36, 0\ns_waitcnt lgkmcnt(0)")
    k(".p2align 3")
    k("K2_LOOP:")
    residue(0, reads(1), "s_add_u32 s36, s36, 1\ns_waitcnt lgkmcnt(0)")
    k("s_cmp_lt_u32 s36, 4\ns_cbranch_scc0 K2_TAIL")
    residue(1, reads(0), "s_waitcnt lgkmcnt(0)\ns_nop 0")
    k("s_branch K2_LOOP\ns_nop 0")
    k("K2_TAIL:")
    k(f"v_lshlrev_b32 v10, 5, v8\nv_lshl_add_u32 v10, v9, 3, v10\ns_add_u32 s29, s31, 480\nv_add_u32 v10, s29, v10")
    er = []
    for b in range(8):
        er.append(f"ds_read_b64 {vr(KF[0]+2*b,2)}, v10 offset:{512*b}")
        er.append(f"ds_read_b64 {vr(KF[0]+16+2*b,2)}, v10 offset:{512*b+4*UX_P}")
    residue(1, er)
    if diag: stamp(k, 2)
    k("s_and_b32 s29, s26, 1\ns_lshl_b32 s29, s29, 4\ns_lshr_b32 s28, s28, s29\ns_lshl_b32 s28, s28, 16\ns_mov_b32 s29, s28")
    k("v_lshrrev_b32 v10, 3, v8\nv_mul_u32_u24 v10, 0x28000, v10\nv_and_b32 v11, 7, v8\nv_lshl_add_u32 v10, v11, 5, v10")
    k("v_lshrrev_b32 v11, 1, v9\nv_lshl_add_u32 v10, v11, 4, v10\nv_and_b32 v11, 1, v9\nv_mul_u32_u24 v11, 0x50000, v11\nv_add_u32 v10, v10, v11")
    k("s_lshl_b32 s33, s26, 8\ns_waitcnt lgkmcnt(0)")
    T0 = UF[0]
    for bp in range(4):
        o = T0 + 16 + 4 * bp
        for bb in range(2):
            b = 2 * bp + bb
            a = ACC + 4 * b
            for hx in range(2):
                ur, xr = KF[0] + 2 * b + hx, KF[0] + 16 + 2 * b + hx
                k(f"v_lshlrev_b32 v{T0}, 16, v{ur}\nv_and_b32 v{T0+1}, 0xffff0000, v{ur}")
                k(f"v_lshlrev_b32 v{T0+2}, 16, v{xr}\nv_and_b32 v{T0+3}, 0xffff0000, v{xr}")
                k(f"v_pk_fma_f32 {vr(a+2*hx,2)}, {vr(T0,2)}, s[28:29], {vr(a+2*hx,2)}")
                k(f"v_pk_add_f32 {vr(a+2*hx,2)}, {vr(a+2*hx,2)}, {vr(T0+2,2)}")
                k(f"v_cvt_pk_bf16_f32 v{o+2*bb+hx}, v{a+2*hx}, v{a+2*hx+1}")
        k("s_nop 1")
        k(f"v_permlane16_swap_b32 v{o}, v{o+2}\nv_permlane16_swap_b32 v{o+1}, v{o+3}")
        k(f"buffer_store_dwordx4 {vr(o,4)}, v10, s[16:19], s33 offen sc1\ns_add_u32 s33, s33, 0xa0000")
    if diag:
        stamp(k, 3)
        k("s_waitcnt vmcnt(0)")
        stamp(k, 4)
    k("s_endpgm")

def gen_k2(diag=False, name="conv_kernel", prep=None):
    k = Kern(name, 256, 256, K2_LDS, vgpr=256, sgpr=64)
    k(f"s_cmp_ge_u32 s2, {241 if prep else 160}\ns_cbranch_scc1 K2_END")
    k(f"s_load_dwordx2 s[4:5], s[0:1], {ARG['ws']}")
    k(f"s_load_dwordx2 s[6:7], s[0:1], {ARG['Dskip']}")
    k.code_prefetch("K2_END", vdst=255)
    k("v_readfirstlane_b32 s25, v0\nv_and_b32 v1, 63, v0")
    k("s_lshr_b32 s25, s25, 6")
    if prep: k("s_cmp_ge_u32 s2, 160\ns_cbranch_scc1 K2_PREP")
    k("s_waitcnt lgkmcnt(0)")
    if diag:
        stamp_setup(k, 0x3400000, "s25"); stamp(k, 0)
    conv_body(k, diag)
    if prep:
        k("K2_PREP:")
        prep(k, diag)
    k("K2_END:")
    k("s_endpgm")
    return k

if __name__ == "__main__":
    open("k2.s", "w").write(build([gen_k2(diag=True)]))
```

```python
from asmlib import *
from layout import *
import struct
def hexf(x): return "0x%08x" % struct.unpack("<I", struct.pack("<f", x))[0]
def vr(a, n=1): return f"v{a}" if n == 1 else f"v[{a}:{a+n-1}]"

def stamp(k, slot, srd="s[40:43]"):
    k("s_memrealtime s[44:45]\ns_memtime s[48:49]\ns_waitcnt lgkmcnt(0)\nv_mov_b32 v250, s44\nv_mov_b32 v249, s48")
    k(f"buffer_store_dword v250, v251, {srd}, 0 offen offset:{slot*4}")
    k(f"buffer_store_dword v249, v251, {srd}, 0 offen offset:{slot*4+32}")
def stamp_setup(k, base, wave_sreg):
    k(f"s_add_u32 s40, s4, {base}\ns_addc_u32 s41, s5, 0\ns_and_b32 s41, s41, 0xffff\ns_mov_b32 s42, 0x200000\ns_mov_b32 s43, 0x20000")
    k(f"s_lshl_b32 s46, s2, 10\ns_lshl_b32 s47, {wave_sreg}, 6\ns_add_u32 s46, s46, s47\nv_mov_b32 v251, s46")
def srd_off(k, d, off, size):
    k(f"s_add_u32 s{d}, s4, {off}\ns_addc_u32 s{d+1}, s5, 0\ns_and_b32 s{d+1}, s{d+1}, 0xffff\ns_mov_b32 s{d+2}, {size}\ns_mov_b32 s{d+3}, 0x20000")

def gen_k3(diag=False, name="gemm1_kernel", X="", R=4):
    SLOT = 24576; NST = 20
    k = Kern(name, 256, 384, SLOT * R, vgpr=256, sgpr=64)
    ACC = 112
    W = [16, 64]; T = [48, 96]
    vT0, vW0, vTa, vWa = 5, 6, 7, 8
    k("s_cmp_ge_u32 s2, 224\ns_cbranch_scc1 K3_END")
    k(f"s_load_dwordx2 s[4:5], s[0:1], {ARG['ws']}")
    k.code_prefetch("K3_END", vdst=255)
    k("s_and_b32 s20, s2, 7\ns_lshr_b32 s21, s2, 3")
    k("s_and_b32 s22, s20, 3\ns_lshl_b32 s22, s22, 2\ns_and_b32 s24, s21, 3\ns_add_u32 s22, s22, s24")
    k("s_lshr_b32 s23, s20, 2\ns_mul_i32 s23, s23, 7\ns_lshr_b32 s24, s21, 2\ns_add_u32 s23, s23, s24")
    k("v_readfirstlane_b32 s25, v0\nv_and_b32 v1, 63, v0")
    k("s_lshr_b32 s25, s25, 6")
    k(f"s_mul_i32 s26, s22, 163840\ns_add_u32 s26, s26, {WS_HT}")
    k(f"s_mul_i32 s27, s23, {W1_NT}\ns_add_u32 s27, s27, {WS_W1}")
    k("s_waitcnt lgkmcnt(0)")
    srd_off(k, 8, "s26", 163840)
    srd_off(k, 12, "s27", W1_NT)
    srd_off(k, 16, WS_H, 32 * H_T64)
    if diag:
        stamp_setup(k, 0x3000000, "s25"); stamp(k, 0)
    k("s_cmp_lt_u32 s25, 4\ns_cbranch_scc1 K3_CONS")
    k("v_lshlrev_b32 v11, 4, v1")
    k("v_lshrrev_b32 v12, 4, v1\nv_lshlrev_b32 v12, 5, v12\nv_xor_b32 v10, v11, v12\nv_xor_b32 v13, 128, v10")
    k("s_mov_b32 s32, 0\ns_mov_b32 s33, 0\ns_mov_b32 s34, 0")
    k("s_cmp_eq_u32 s25, 5\ns_cbranch_scc1 K3_LOADB")
    PER = 12
    def issue(which):
        if which == 0:
            grp = [("s[8:11]", "T", "s32", 0, 0), ("s[8:11]", "T", "s32", 4096, 4096), ("s[12:15]", "W", "s33", 0, 8192)]
        else:
            grp = [("s[12:15]", "W", "s33", 4096 * (i + 1), 8192 + 4096 * (i + 1)) for i in range(3)]
        for srd, kind, so, goff, loff in grp:
            k(f"s_add_u32 m0, s34, {loff}\ns_add_u32 s35, {so}, {goff}")
            for j in range(4):
                vo = "v11" if kind == "W" else ("v10" if j % 2 == 0 else "v13")
                if "d" not in X: k(f"buffer_load_dwordx4 {vo}, {srd}, s35 offen offset:{j*1024} lds")
        k("s_add_u32 s32, s32, 8192\ns_add_u32 s33, s33, 16384")
        k(f"s_add_u32 s34, s34, {SLOT}\ns_cmp_eq_u32 s34, {SLOT*R}\ns_cselect_b32 s34, 0, s34")
    for which in (0, 1):
        if which == 1: k("K3_LOADB:")
        Lp, Lm = k.lab("pro"), k.lab("main")
        k("s_mov_b32 s36, 0")
        k(f"{Lp}:"); issue(which)
        k(f"s_add_u32 s36, s36, 1\ns_cmp_lt_u32 s36, {R-1}\ns_cbranch_scc1 {Lp}")
        k(f"{Lm}:")
        k(f"s_waitcnt vmcnt({PER*(R-2)})\ns_barrier"); issue(which)
        k(f"s_add_u32 s36, s36, 1\ns_cmp_lt_u32 s36, {NST}\ns_cbranch_scc1 {Lm}")
        for j in range(R - 2, -1, -1):
            k(f"s_waitcnt vmcnt({PER*j})\ns_barrier")
        k("s_endpgm")
    k("K3_CONS:")
    k("s_and_b32 s28, s25, 1\ns_lshr_b32 s29, s25, 1")
    k("v_lshrrev_b32 v10, 2, v1")
    k("v_and_b32 v11, 7, v10\ns_lshl_b32 s30, s28, 2\nv_xor_b32 v11, s30, v11\nv_lshlrev_b32 v11, 5, v11")
    k("v_lshl_add_u32 v11, v10, 8, v11\nv_and_b32 v10, 3, v1")
    k(f"v_lshl_add_u32 v{vT0}, v10, 3, v11")
    k(f"s_lshl_b32 s30, s29, 13\ns_add_u32 s30, s30, 8192\nv_lshlrev_b32 v{vW0}, 4, v1\nv_add_u32 v{vW0}, s30, v{vW0}")
    TA = [7, 12, 13, 14]
    def set_addr():
        k(f"v_add_u32 v{TA[0]}, s34, v{vT0}\nv_add_u32 v{vWa}, s34, v{vW0}")
        for tau in range(1, 4): k(f"v_xor_b32 v{TA[tau]}, {32*tau}, v{TA[0]}")
    k("s_mov_b32 s34, 0\ns_mov_b32 s36, 0")
    set_addr()
    def treads(s):
        return [f"ds_read_b64_tr_b16 {vr(T[s]+4*tau+2*half, 2)}, v{TA[tau]} offset:{4096*half}" for tau in range(4) for half in range(2)]
    def advance():
        k(f"s_add_u32 s34, s34, {SLOT}\ns_cmp_eq_u32 s34, {SLOT*R}\ns_cselect_b32 s34, 0, s34")
        set_addr()
    k("s_cmp_eq_u32 s23, 13\ns_cselect_b32 s31, s29, 0\ns_cmp_eq_u32 s31, 1\ns_cbranch_scc1 K3_STAT")
    for r in range(ACC, ACC + 128): k(f"v_mov_b32 v{r}, 0")
    def reads(s):
        r = treads(s)
        w = [f"ds_read_b128 {vr(W[s]+4*v, 4)}, v{vWa} offset:{v*1024}" for v in range(8)]
        return [w[0]] + r + w[1:]
    def adv_list():
        return [f"s_add_u32 s34, s34, {SLOT}", f"s_cmp_eq_u32 s34, {SLOT*R}", f"s_cselect_b32 s34, 0, s34\nv_add_u32 v{TA[0]}, s34, v{vT0}",
                f"v_add_u32 v{vWa}, s34, v{vW0}\nv_xor_b32 v{TA[1]}, 32, v{TA[0]}", f"v_xor_b32 v{TA[2]}, 64, v{TA[0]}\ns_add_u32 s36, s36, 1", f"v_xor_b32 v{TA[3]}, 96, v{TA[0]}"]
    def stage(ms, rd, adv=True):
        rd = list(rd)
        if "r" in X: rd = []
        if adv: rd += adv_list()
        for v in range(8):
            for tau in range(4):
                a = ACC + 16 * v + 4 * tau
                k(f"v_mfma_f32_16x16x32_bf16 {vr(a,4)}, {vr(W[ms]+4*v,4)}, {vr(T[ms]+4*tau,4)}, {vr(a,4)}")
                if rd: k(rd.pop(0))
                if adv and v == 7 and tau == 2: k("s_cmp_lt_u32 s36, 19\ns_waitcnt lgkmcnt(0)")
        assert not rd
    k("s_barrier")
    if diag: stamp(k, 1)
    for r in reads(0): k(r)
    advance()
    k("s_waitcnt lgkmcnt(0)\ns_barrier")
    k(".p2align 3")
    k("K3_LOOP:")
    stage(0, reads(1))
    k("s_cbranch_scc0 K3_TAIL\ns_barrier")
    stage(1, reads(0))
    k("s_barrier\ns_branch K3_LOOP")
    k("K3_TAIL:")
    stage(1, [], adv=False)
    if diag: stamp(k, 2)
    k("s_lshl_b32 s26, s22, 1\ns_add_u32 s26, s26, s28")
    k(f"s_mul_i32 s26, s26, {H_T64}\ns_lshl_b32 s27, s23, 14\ns_add_u32 s26, s26, s27\ns_lshl_b32 s27, s29, 13\ns_add_u32 s26, s26, s27")
    k("v_lshlrev_b32 v15, 4, v1\ns_nop 4")
    for grp in range(2):
        for tau in range(4):
            a = ACC + 64 * grp + 4 * tau
            for hi in range(2):
                for j in range(2):
                    k(f"v_pk_mul_f32 {vr(a+16*hi+2*j,2)}, {vr(a+16*hi+2*j,2)}, {vr(a+32+16*hi+2*j,2)}")
            for hi in range(2):
                for j in range(2):
                    k(f"v_cvt_pk_bf16_f32 v{a+32+2*hi+j}, v{a+16*hi+2*j}, v{a+16*hi+2*j+1}")
            k(f"buffer_store_dwordx4 {vr(a+32,4)}, v15, s[16:19], s26 offen offset:{tau*1024} sc1")
        k("s_add_u32 s26, s26, 4096")
    if diag:
        stamp(k, 3)
        k("s_waitcnt vmcnt(0)")
        stamp(k, 4)
    k("s_endpgm")
    k("K3_STAT:")
    S0 = 16
    for r in range(S0, S0 + 8): k(f"v_mov_b32 v{r}, 0")
    k("v_mov_b32 v4, 0x3f803f80")
    k("K3_SLOOP:")
    k("s_barrier")
    for r in treads(0): k(r)
    advance()
    k("s_waitcnt lgkmcnt(0)")
    for j in range(4):
        for tau in range(4):
            k(f"v_dot2c_f32_bf16 v{S0+tau}, v{T[0]+4*tau+j}, v4")
            k(f"v_dot2c_f32_bf16 v{S0+4+tau}, v{T[0]+4*tau+j}, v{T[0]+4*tau+j}")
    k(f"s_add_u32 s36, s36, 1\ns_cmp_lt_u32 s36, {NST}\ns_cbranch_scc1 K3_SLOOP")
    k("s_nop 2")
    for r in range(S0, S0 + 8): k(f"v_mov_b32 v{r+8}, v{r}")
    k("s_nop 1")
    for r in range(S0, S0 + 8): k(f"v_permlane32_swap_b32 v{r+8}, v{r}")
    k("s_nop 1")
    for r in range(S0, S0 + 8): k(f"v_add_f32 v{r}, v{r}, v{r+8}")
    for r in range(S0, S0 + 8): k(f"v_mov_b32 v{r+8}, v{r}")
    k("s_nop 1")
    for r in range(S0, S0 + 8): k(f"v_permlane16_swap_b32 v{r+8}, v{r}")
    k("s_nop 1")
    for r in range(S0, S0 + 8): k(f"v_add_f32 v{r}, v{r}, v{r+8}")
    k("v_lshrrev_b32 v10, 4, v1")
    for tau in range(1, 4):
        k(f"v_cmp_eq_u32 vcc, {tau}, v10\ns_nop 1\nv_cndmask_b32 v{S0}, v{S0}, v{S0+tau}, vcc\nv_cndmask_b32 v{S0+4}, v{S0+4}, v{S0+4+tau}, vcc")
    k(f"v_mul_f32 v10, {hexf(1.0/640)}, v{S0}\nv_mul_f32 v11, {hexf(1.0/640)}, v{S0+4}")
    k("v_fma_f32 v11, -v10, v10, v11")
    k(f"v_max_f32 v11, 0, v11\nv_add_f32 v11, {hexf(1e-5)}, v11\nv_rcp_f32 v12, v11")
    srd_off(k, 16, WS_RS, 8192)
    k("s_lshl_b32 s26, s22, 1\ns_add_u32 s26, s26, s28\ns_lshl_b32 s26, s26, 8\nv_lshlrev_b32 v15, 2, v1")
    k("buffer_store_dword v12, v15, s[16:19], s26 offen sc1")
    k("K3_END:")
    k("s_endpgm")
    return k

if __name__ == "__main__":
    import sys
    X = sys.argv[1] if len(sys.argv) > 1 else ""
    R = int(sys.argv[2]) if len(sys.argv) > 2 else 4
    open("k3%s_%d.s" % (X, R), "w").write(build([gen_k3(diag=True, X=X, R=R)]))
```

```python
from asmlib import *
from layout import *
from gen_k3 import stamp, stamp_setup, vr, srd_off, hexf
def ar(a, n=1): return f"a{a}" if n == 1 else f"a[{a}:{a+n-1}]"

def gen_k4(diag=False, name="gemm2_kernel", DEPTH=5, X="", STF=""):
    RED = 0; RES = 61440
    NV = 256
    k = Kern(name, 256, 256, RES + 4 * 3072, vgpr=NV + 80, sgpr=64, accum=NV)
    BUF = 32
    k("s_cmp_ge_u32 s2, 256\ns_cbranch_scc1 K4_END")
    k(f"s_load_dwordx2 s[4:5], s[0:1], {ARG['ws']}")
    k(f"s_load_dwordx2 s[6:7], s[0:1], {ARG['out']}")
    k.code_prefetch("K4_END", vdst=255)
    k("s_and_b32 s20, s2, 7\ns_lshr_b32 s21, s2, 3")
    k("s_and_b32 s22, s20, 3\ns_lshl_b32 s22, s22, 3\ns_and_b32 s24, s21, 7\ns_add_u32 s22, s22, s24")
    k("s_lshr_b32 s23, s20, 2\ns_lshl_b32 s23, s23, 2\ns_lshr_b32 s24, s21, 3\ns_add_u32 s23, s23, s24")
    k("v_readfirstlane_b32 s25, v0\nv_and_b32 v1, 63, v0")
    k("s_lshr_b32 s25, s25, 6")
    k(f"s_mul_i32 s26, s22, {H_T64}\ns_add_u32 s26, s26, {WS_H}")
    k(f"s_mul_i32 s27, s23, {WD_DT}\ns_add_u32 s27, s27, {WS_WD}")
    k("v_lshlrev_b32 v2, 4, v1\nv_add_u32 v3, 4096, v2")
    for tp in range(4):
        k(f"s_add_u32 s28, s25, {tp}\ns_and_b32 s28, s28, 3\ns_lshl_b32 s28, s28, 10\nv_add_u32 v{4+tp}, s28, v2")
    k("s_lshl_b32 s32, s25, 12\ns_mul_i32 s33, s25, 5120")
    k("s_waitcnt lgkmcnt(0)")
    srd_off(k, 8, "s26", H_T64)
    srd_off(k, 12, "s27", WD_DT)
    if diag:
        stamp_setup(k, 0x3200000, "s25"); stamp(k, 0)
    def loads(b):
        base = BUF + 36 * b
        for tp in range(4):
            k(f"buffer_load_dwordx4 {vr(base+20+4*tp,4)}, v{4+tp}, s[8:11], s32 offen")
        for i in range(5):
            if i < 4: k(f"buffer_load_dwordx4 {vr(base+4*i,4)}, v2, s[12:15], s33 offen offset:{i*1024}")
            else: k(f"buffer_load_dwordx4 {vr(base+4*i,4)}, v3, s[12:15], s33 offen")
        k("s_add_u32 s32, s32, 16384\ns_add_u32 s33, s33, 20480")
    loads(0)
    srd_off(k, 16, WS_HT, 2621440)
    srd_off(k, 36, WS_RS, 8192)
    k("s_lshr_b32 s28, s22, 1\ns_mul_i32 s28, s28, 163840\ns_mul_i32 s29, s23, 20480\ns_add_u32 s28, s28, s29")
    k("s_and_b32 s29, s22, 1\ns_lshl_b32 s29, s29, 7\ns_add_u32 s28, s28, s29\ns_lshl_b32 s29, s25, 5\ns_add_u32 s28, s28, s29")
    k("v_lshrrev_b32 v10, 1, v1\nv_lshlrev_b32 v10, 8, v10\nv_and_b32 v11, 1, v1\nv_lshl_add_u32 v10, v11, 4, v10")
    k(f"s_mul_i32 s29, s25, 3072\ns_add_u32 s29, s29, {RES}")
    for j in range(3):
        k(f"s_add_u32 m0, s29, {j*1024}\ns_nop 0\nbuffer_load_dwordx4 v10, s[16:19], s28 offen lds\ns_add_u32 s28, s28, 8192")
    k("s_lshl_b32 s28, s22, 8\ns_lshl_b32 s30, s25, 6\ns_add_u32 s28, s28, s30\nv_and_b32 v11, 15, v1\nv_lshlrev_b32 v12, 2, v11")
    k("buffer_load_dword v13, v12, s[36:39], s28 offen")
    for b in range(1, DEPTH): loads(b)
    for r in range(80): k(f"v_accvgpr_write_b32 a{r}, 0")
    NS = 14
    for s in range(NS):
        left = min(DEPTH - 1, NS - 1 - s)
        extra = 4 if s == 0 else 0
        k(f"s_waitcnt vmcnt({9*left+extra})")
        if diag and s == 0: pass
        base = BUF + 36 * (s % DEPTH)
        for tp in range(4):
            for i in range(5):
                a = 20 * tp + 4 * i
                k(f"v_mfma_f32_16x16x32_bf16 {ar(a,4)}, {vr(base+4*i,4)}, {vr(base+20+4*tp,4)}, {ar(a,4)}")
        if s + DEPTH < NS: loads(s % DEPTH)
    if diag: stamp(k, 2)
    for tp in range(1, 4):
        k(f"s_add_u32 s28, s25, {tp}\ns_and_b32 s28, s28, 3\ns_mul_i32 s28, s28, 15360\ns_add_u32 s28, s28, {(tp-1)*5120}\nv_add_u32 v{14+tp}, s28, v2")
    k("s_mul_i32 s28, s25, 15360\nv_add_u32 v14, s28, v2")
    for tp in range(1, 4):
        for i in range(5):
            k(f"ds_write_b128 v{14+tp}, {ar(20*tp+4*i,4)} offset:{i*1024}")
    k("v_lshrrev_b32 v18, 4, v1\nv_mul_u32_u24 v18, 20, v18\nv_lshrrev_b32 v19, 2, v1\nv_and_b32 v19, 3, v19\nv_add_u32 v18, v18, v19")
    k("v_lshlrev_b32 v18, 5, v18\nv_and_b32 v19, 3, v1\nv_lshl_add_u32 v18, v19, 3, v18\nv_add_u32 v18, s29, v18")
    for i in range(5): k(f"ds_read_b64_tr_b16 {vr(20+2*i,2)}, v18 offset:{i*128}")
    for r in range(20): k(f"v_accvgpr_read_b32 v{32+r}, a{r}")
    k("s_waitcnt lgkmcnt(0)\ns_barrier")
    for sl in range(3):
        for i in range(5):
            k(f"ds_read_b128 {vr(52+20*sl+4*i,4)}, v14 offset:{sl*5120+i*1024}")
    k("s_lshl_b32 s28, s22, 6\ns_lshl_b32 s30, s25, 4\ns_add_u32 s28, s28, s30\ns_mul_i32 s28, s28, 1280\ns_mul_i32 s30, s23, 160\ns_add_u32 s28, s28, s30")
    k("v_mul_u32_u24 v11, 1280, v11\nv_lshrrev_b32 v12, 4, v1\nv_mul_u32_u24 v12, 40, v12\nv_add_u32 v11, v11, v12")
    k.srd(16, 6, 2621440)
    for r in range(10):
        k(f"v_lshlrev_b32 v{112+2*r}, 16, v{20+r}\nv_and_b32 v{113+2*r}, 0xffff0000, v{20+r}")
    for sl in range(3):
        k(f"s_waitcnt lgkmcnt({5*(2-sl)})")
        for r in range(0, 20, 2):
            k(f"v_pk_add_f32 {vr(32+r,2)}, {vr(32+r,2)}, {vr(52+20*sl+r,2)}")
    k("v_mov_b32 v12, v13")
    for r in range(0, 20, 2):
        k(f"v_pk_fma_f32 {vr(32+r,2)}, {vr(32+r,2)}, v[12:13], {vr(112+r,2)}")
    for r in range(10):
        k(f"v_cvt_pk_bf16_f32 v{52+r}, v{32+2*r}, v{33+2*r}")
    k(f"buffer_store_dwordx4 v[52:55], v11, s[16:19], s28 offen {STF}")
    k(f"buffer_store_dwordx4 v[56:59], v11, s[16:19], s28 offen offset:16 {STF}")
    k(f"buffer_store_dwordx2 v[60:61], v11, s[16:19], s28 offen offset:32 {STF}")
    if diag:
        stamp(k, 3)
        k("s_waitcnt vmcnt(0)")
        stamp(k, 4)
    k("K4_END:")
    k("s_endpgm")
    return k

if __name__ == "__main__":
    import sys
    from gen_k3 import gen_k3
    D = int(sys.argv[1]) if len(sys.argv) > 1 else 5
    open("k34_%d.s" % D, "w").write(build([gen_k3(diag=True), gen_k4(diag=True, DEPTH=D)]))
```

```python
from asmlib import *
from layout import *
from gen_k3 import stamp, stamp_setup, vr, srd_off, hexf

def prep(k, diag=False):
    k("s_cmp_ge_u32 s2, 214\ns_cbranch_scc1 K2_PREPD")
    k("s_sub_u32 s20, s2, 160\ns_cmp_ge_u32 s20, 27\ns_cselect_b32 s21, 1, 0\ns_mul_i32 s22, s21, 27\ns_sub_u32 s22, s20, s22")
    k(f"s_lshl_b32 s23, s21, 3\ns_add_u32 s23, s23, {ARG['Wg']}\ns_load_dwordx2 s[34:35], s[0:1], s23")
    k("v_lshrrev_b32 v2, 3, v1\nv_mul_u32_u24 v3, 3456, v2\nv_and_b32 v4, 7, v1\nv_lshlrev_b32 v4, 4, v4\nv_and_b32 v2, 2, v2\nv_lshlrev_b32 v2, 5, v2\nv_xor_b32 v4, v4, v2\nv_add_u32 v3, v3, v4")
    k(f"s_lshl_b32 s26, s22, 7\ns_mul_i32 s27, s25, {160*3456}\ns_add_u32 s26, s26, s27\ns_mul_i32 s27, s25, {160*128}")
    k("s_waitcnt lgkmcnt(0)")
    k.srd(8, 34, 640 * 3456)
    if diag:
        stamp_setup(k, 0x3400000, "s25"); stamp(k, 0)
    k("s_mov_b32 s36, 0")
    k("PW1_LD:")
    k(f"s_mov_b32 m0, s27\ns_add_u32 s27, s27, 1024\nbuffer_load_dwordx4 v3, s[8:11], s26 offen lds\ns_add_u32 s26, s26, {8*3456}")
    k("s_add_u32 s36, s36, 1\ns_cmp_lt_u32 s36, 20\ns_cbranch_scc1 PW1_LD")
    srd_off(k, 12, WS_W1, 14 * W1_NT)
    k("s_lshr_b32 s28, s25, 1\ns_and_b32 s29, s25, 1\ns_lshl_b32 s30, s22, 1\ns_add_u32 s30, s30, s28")
    k(f"s_lshr_b32 s31, s30, 2\ns_mul_i32 s31, s31, {W1_NT}\ns_and_b32 s30, s30, 3\ns_lshl_b32 s30, s30, 12\ns_add_u32 s31, s31, s30")
    k("s_lshl_b32 s30, s21, 1\ns_add_u32 s30, s30, s29\ns_lshl_b32 s30, s30, 10\ns_add_u32 s31, s31, s30")
    k("v_lshrrev_b32 v2, 2, v1\nv_and_b32 v4, 3, v1\nv_lshlrev_b32 v4, 4, v4\ns_lshl_b32 s30, s28, 6\nv_add_u32 v4, s30, v4")
    k("v_and_b32 v5, 2, v2\nv_lshlrev_b32 v5, 5, v5\nv_xor_b32 v4, v4, v5\nv_lshl_add_u32 v4, v2, 7, v4\ns_lshl_b32 s30, s29, 3\nv_add_u32 v4, s30, v4")
    k("v_add_u32 v5, 0xa000, v4\nv_lshlrev_b32 v6, 4, v1\nv_mov_b32 v7, 0x3f803f80")
    for r in range(8, 12): k(f"v_mov_b32 v{r}, 0")
    k("s_waitcnt vmcnt(0)\ns_barrier")
    if diag: stamp(k, 1)
    FR = 32
    for st in range(20):
        base, o = ("v4", st * 4096) if st < 10 else ("v5", (st - 10) * 4096)
        k(f"ds_read_b64_tr_b16 {vr(FR+4*st,2)}, {base} offset:{o}\nds_read_b64_tr_b16 {vr(FR+4*st+2,2)}, {base} offset:{o+2048}")
        if st >= 4:
            k("s_waitcnt lgkmcnt(8)")
            for j in range(4): k(f"v_dot2c_f32_bf16 v{8+j}, v{FR+4*(st-4)+j}, v7")
    for st in range(16, 20):
        k(f"s_waitcnt lgkmcnt({2*(19-st)})")
        for j in range(4): k(f"v_dot2c_f32_bf16 v{8+j}, v{FR+4*st+j}, v7")
    k("s_nop 2\nv_add_f32 v8, v8, v9\nv_add_f32 v10, v10, v11\nv_add_f32 v8, v8, v10\nv_mov_b32 v9, v8\ns_nop 1")
    k("v_permlane32_swap_b32 v9, v8\ns_nop 1\nv_add_f32 v8, v8, v9\nv_mov_b32 v9, v8\ns_nop 1")
    k("v_permlane16_swap_b32 v9, v8\ns_nop 1\nv_add_f32 v8, v8, v9")
    k(f"v_mul_f32 v12, {hexf(-1.0/640)}, v8\nv_mov_b32 v13, v12\nv_mov_b32 v14, v12\nv_mov_b32 v15, v12")
    def rd(s): k(f"ds_read_b64_tr_b16 {vr(FR+4*s,2)}, v4\nds_read_b64_tr_b16 {vr(FR+4*s+2,2)}, v4 offset:2048\nv_add_u32 v4, 0x1000, v4")
    def proc(s):
        o = FR + 8 + 4 * s
        for j in range(4):
            w = FR + 4 * s + j
            k(f"v_lshlrev_b32 v16, 16, v{w}\nv_and_b32 v17, 0xffff0000, v{w}")
            k("v_pk_add_f32 v[16:17], v[16:17], v[14:15]")
            k(f"v_cvt_pk_bf16_f32 v{o+j}, v16, v17")
            k("v_pk_add_f32 v[16:17], v[16:17], v[12:13]")
            k(f"v_lshlrev_b32 v18, 16, v{o+j}\nv_and_b32 v19, 0xffff0000, v{o+j}")
            k("v_pk_add_f32 v[14:15], v[16:17], v[18:19] neg_lo:[0,1] neg_hi:[0,1]")
        k(f"buffer_store_dwordx4 {vr(o,4)}, v6, s[12:15], s31 offen sc1\ns_add_u32 s31, s31, 16384")
    rd(0)
    k("s_mov_b32 s36, 0")
    k("PW1_P2:")
    rd(1); k("s_waitcnt lgkmcnt(2)"); proc(0)
    rd(0); k("s_waitcnt lgkmcnt(2)"); proc(1)
    k("s_add_u32 s36, s36, 1\ns_cmp_lt_u32 s36, 10\ns_cbranch_scc1 PW1_P2")
    if diag:
        stamp(k, 3); k("s_waitcnt vmcnt(0)"); stamp(k, 4)
    k("s_endpgm")
    k("K2_PREPD:")
    k(f"s_load_dwordx2 s[34:35], s[0:1], {ARG['Wd']}")
    k("s_sub_u32 s20, s2, 214\ns_mul_i32 s26, s20, 81920\ns_mul_i32 s27, s25, 20480\ns_add_u32 s26, s26, s27\nv_lshlrev_b32 v6, 4, v1")
    k("s_waitcnt lgkmcnt(0)")
    k.srd(8, 34, 1728 * 1280)
    if diag:
        stamp_setup(k, 0x3400000, "s25"); stamp(k, 0)
    k("s_mov_b32 s36, 0")
    k("PWD_LD:")
    k("s_mov_b32 m0, s27\ns_add_u32 s27, s27, 4096")
    for j in range(4): k(f"buffer_load_dwordx4 v6, s[8:11], s26 offen offset:{j*1024} lds")
    k("s_add_u32 s26, s26, 4096\ns_add_u32 s36, s36, 1\ns_cmp_lt_u32 s36, 5\ns_cbranch_scc1 PWD_LD")
    srd_off(k, 12, WS_WD, 8 * WD_DT)
    k("s_lshr_b32 s28, s25, 1\ns_and_b32 s29, s25, 1")
    k("v_lshrrev_b32 v2, 4, v1\nv_lshlrev_b32 v2, 3, v2\nv_lshrrev_b32 v3, 2, v1\nv_and_b32 v3, 3, v3\nv_add_u32 v2, v2, v3\ns_lshl_b32 s30, s28, 5\nv_add_u32 v2, s30, v2")
    k("v_mul_u32_u24 v2, 1280, v2\nv_and_b32 v3, 3, v1\nv_mul_u32_u24 v3, 40, v3\ns_mul_i32 s30, s29, 640\nv_add3_u32 v4, v2, v3, s30")
    k(f"s_mul_i32 s31, s29, {4*WD_DT}\ns_lshl_b32 s30, s20, 1\ns_add_u32 s30, s30, s28\ns_mul_i32 s30, s30, 5120\ns_add_u32 s31, s31, s30\nv_add_u32 v7, 4096, v6")
    k("s_waitcnt vmcnt(0)\ns_barrier")
    if diag: stamp(k, 1)
    k("s_mov_b32 s36, 0")
    k("PWD_P:")
    for i in range(5):
        k(f"ds_read_b64_tr_b16 {vr(32+4*i,2)}, v4 offset:{8*i}\nds_read_b64_tr_b16 {vr(34+4*i,2)}, v4 offset:{8*i+5120}")
    for i in range(5):
        k(f"s_waitcnt lgkmcnt({2*(4-i)})")
        if i < 4: k(f"buffer_store_dwordx4 {vr(32+4*i,4)}, v6, s[12:15], s31 offen offset:{i*1024} sc1")
        else: k(f"buffer_store_dwordx4 {vr(32+4*i,4)}, v7, s[12:15], s31 offen sc1")
    k(f"v_add_u32 v4, 160, v4\ns_add_u32 s31, s31, {WD_DT}\ns_add_u32 s36, s36, 1\ns_cmp_lt_u32 s36, 4\ns_cbranch_scc1 PWD_P")
    if diag:
        stamp(k, 3); k("s_waitcnt vmcnt(0)"); stamp(k, 4)
    k("s_endpgm")

if __name__ == "__main__":
    from gen_k2 import gen_k2
    open("k2p.s", "w").write(build([gen_k2(diag=True, prep=prep)]))
```

```python
import numpy as np
L, D, N, F = 2048, 640, 128, 1728
WS_UX = 0x000000
WS_K  = 0x600000
KROWB = 4224
WS_HT = 0xC00000
WS_RS = 0xE90000
WS_CNT = 0xEA0000
WS_W1 = 0xF00000
W1_NT = 20 * 16384
WS_WD = 0x1400000
WD_DT = 54 * 5 * 1024
WS_H  = 0x1700000
H_T64 = 54 * 4096
WS_END = WS_H + 32 * H_T64
def bf2f(x): return (np.asarray(x).astype(np.uint32) << 16).view(np.float32)
def f2bf(x):
    u = np.ascontiguousarray(x, dtype=np.float32).view(np.uint32)
    return ((u + 0x7FFF + ((u >> 16) & 1)) >> 16).astype(np.uint16)
def mk_HT(h_bf):
    return np.ascontiguousarray(h_bf.reshape(16, 128, 640).transpose(0, 2, 1))
def center(W):
    w = bf2f(W); return f2bf(w - w.mean(0, keepdims=True, dtype=np.float64).astype(np.float32))
def mk_W1(Wg, Wu):
    Wp = np.zeros((2, 640, 14 * 128), np.uint16)
    Wp[0, :, :F] = Wg; Wp[1, :, :F] = Wu
    out = np.zeros((14, 20, 4, 4, 64, 8), np.uint16)
    lane = np.arange(64); row = lane & 15; g = lane >> 4
    kk = np.concatenate([4 * g[:, None] + np.arange(4), 16 + 4 * g[:, None] + np.arange(4)], 1)
    for G in range(56):
        nt, grp = divmod(G, 4)
        for tile in range(4):
            f = 32 * G + 8 * (row >> 2) + 4 * (tile & 1) + (row & 3)
            cols = Wp[tile >> 1][:, f].T.reshape(64, 20, 32)
            out[nt, :, grp, tile] = np.take_along_axis(cols, np.broadcast_to(kk[:, None, :], (64, 20, 8)), 2).transpose(1, 0, 2)
    return out
def mk_WD(Wd):
    out = np.zeros((8, 54, 5, 64, 8), np.uint16)
    lane = np.arange(64); row = lane & 15; g = lane >> 4
    for dt in range(8):
        for i in range(5):
            d = 80 * dt + 20 * (row >> 2) + 4 * i + (row & 3)
            cols = Wd[:, d].T.reshape(64, 54, 4, 8)
            out[dt, :, i] = cols[lane, :, g, :].transpose(1, 0, 2)
    return out
def mk_H(Hm):
    return np.ascontiguousarray(Hm.reshape(32, 4, 16, 54, 4, 8).transpose(0, 3, 1, 4, 2, 5))
def un_H(buf):
    return buf.reshape(32, 54, 4, 4, 16, 8).transpose(0, 2, 4, 1, 3, 5).reshape(2048, 1728)
def mk_UX(u_bf, x_bf):
    a = np.stack([u_bf, x_bf])
    return np.ascontiguousarray(a.reshape(2, 256, 8, 160, 4).transpose(3, 1, 0, 4, 2))
def ln(x):
    x = x.astype(np.float64); m = x.mean(-1, keepdims=True); v = x.var(-1, keepdims=True)
    return (x - m) / np.sqrt(v + 1e-5)
def lround():
    l = np.arange(2048, dtype=np.float32)
    return bf2f(f2bf(l)).astype(np.int64)
def mk_Kfull(I):
    dt = bf2f(f2bf(np.exp(bf2f(I["A_log_dt"]).astype(np.float64)).astype(np.float32))).astype(np.float64)[:, None]
    A = bf2f(I["A_A_re"]).astype(np.float64) + 1j * bf2f(I["A_A_im"])
    W = (bf2f(I["A_C_re"]).astype(np.float64) + 1j * bf2f(I["A_C_im"])) * (bf2f(I["A_B_re"]).astype(np.float64) + 1j * bf2f(I["A_B_im"])) * dt
    lr = lround(); vs = np.unique(lr)
    Kv = np.empty((640, len(vs)))
    for d0 in range(0, 640, 64):
        P = np.exp((dt * A)[d0:d0+64, :, None] * vs[None, None, :])
        Kv[d0:d0+64] = np.einsum("dn,dnl->dl", W[d0:d0+64], P).real
    return Kv[:, np.searchsorted(vs, lr)]
def mk_K(Kfull):
    kb = f2bf(Kfull.astype(np.float32))
    out = np.zeros((640, 2, KROWB // 2), np.uint16)
    out[:, 0, :2048] = kb[:, ::-1]
    out[:, 1, :2047] = kb[:, ::-1][:, 1:]
    return out
def conv_ref(Kf, u):
    Y = np.fft.irfft(np.fft.rfft(Kf, 4096, axis=1) * np.fft.rfft(u.T, 4096, axis=1), 4096, axis=1)[:, :2048]
    return Y.T
def un_HT(buf): return buf.reshape(16, 640, 128).transpose(0, 2, 1).reshape(2048, 640)
```

```python
import sys
from asmlib import *
from gen_k1 import gen_k1
from gen_k2 import gen_k2
from gen_prep import prep
from gen_k3 import gen_k3
from gen_k4 import gen_k4
HDR = open("cdna_kernels/" + KN + ".s.ref").read().split("; Override launch")[0]
def make(diag=False, PFM=3, extra_empty=0, **kw):
    ks = [gen_k1(diag=diag, PFM=PFM), gen_k2(diag=diag, prep=prep), gen_k3(diag=diag), gen_k4(diag=diag, DEPTH=3)]
    order = list(ks)
    if extra_empty:
        e = Kern("nop_kernel", 256, 256, 0, vgpr=16, sgpr=16); e("s_endpgm"); ks.append(e); order += [e] * extra_empty
    return build(ks, order=order, header=HDR)
if __name__ == "__main__":
    open("all.s", "w").write(make())
    open("all_diag.s", "w").write(make(diag=True))
    open("all_pf0.s", "w").write(make(PFM=0))
    open("all_e4.s", "w").write(make(extra_empty=4))
```

```python
import re, sys
from gen_all import make
src = make()
names = ["prep_kernel", "conv_kernel", "gemm1_kernel", "gemm2_kernel"]
maxv = {"prep_kernel": 122, "conv_kernel": 252, "gemm1_kernel": 252, "gemm2_kernel": 252}
out = []
cur = None
for ln in src.split("\n"):
    m = re.match(r"^(\w+):$", ln)
    if m and m.group(1) in names:
        cur = names.index(m.group(1))
        out.append(ln)
        out.append("    s_memrealtime s[66:67]")
        out.append("    s_load_dwordx2 s[64:65], s[0:1], 112")
        out.append("    s_waitcnt lgkmcnt(0)")
        out.append(f"    s_sub_u32 s64, s64, {512*cur}\n    s_subb_u32 s65, s65, 0")
        continue
    if ln.strip() == "s_endpgm" and cur is not None:
        v = maxv[names[cur]]
        out.append("    s_waitcnt vmcnt(0) lgkmcnt(0)")
        out.append("    s_memrealtime s[68:69]\n    s_waitcnt lgkmcnt(0)")
        out.append("    s_mov_b64 exec, 1")
        out.append(f"    s_not_b32 s70, s66\n    v_mov_b32 v{v}, s70\n    v_mov_b32 v{v+1}, 0")
        out.append(f"    global_atomic_umax v{v+1}, v{v}, s[64:65] offset:{cur*16}")
        out.append(f"    v_mov_b32 v{v}, s66\n    global_atomic_umax v{v+1}, v{v}, s[64:65] offset:{cur*16+4}")
        out.append(f"    v_mov_b32 v{v}, s68\n    global_atomic_umax v{v+1}, v{v}, s[64:65] offset:{cur*16+8}")
    out.append(ln)
s = "\n".join(out)
s = re.sub(r"next_free_sgpr \d+", "next_free_sgpr 80", s)
open("all_dbg.s", "w").write(s)
```

```python
from asmlib import *
from gen_k3 import srd_off
def gen_sum(items):
    k = Kern("summary_kernel", 1, 1024, 1024, vgpr=32, sgpr=32)
    k("s_cmp_ge_u32 s2, 1\ns_cbranch_scc1 SUM_END")
    k(f"s_load_dwordx2 s[4:5], s[0:1], {ARG['ws']}\ns_load_dwordx2 s[6:7], s[0:1], {ARG['dbg']}\ns_waitcnt lgkmcnt(0)")
    k.srd(8, 4, 0x4000000); k.srd(12, 6, 256)
    k("v_lshlrev_b32 v1, 2, v0\nv_mov_b32 v2, 0\nv_cmp_gt_u32 vcc, 64, v0\ns_and_saveexec_b64 s[16:17], vcc\nds_write_b32 v1, v2\ns_mov_b64 exec, s[16:17]\ns_waitcnt lgkmcnt(0)\ns_barrier")
    for i, (base, lo, hi, slot, op) in enumerate(items):
        k(f"v_min_u32 v3, {hi-lo-1}, v0\nv_lshlrev_b32 v3, 10, v3\ns_mov_b32 s18, {base + lo*1024 + slot*4}")
        k("buffer_load_dword v4, v3, s[8:11], s18 offen\ns_waitcnt vmcnt(0)")
        if op == "min": k("v_not_b32 v4, v4")
        k(f"v_mov_b32 v5, {i*4}\nds_max_u32 v5, v4")
    k("s_waitcnt lgkmcnt(0)\ns_barrier\nds_read_b32 v4, v1\ns_waitcnt lgkmcnt(0)\nbuffer_store_dword v4, v1, s[12:15], 0 offen")
    k("SUM_END:\ns_endpgm")
    return k
ITEMS = [(0x3600000, 0, 576, 0, "min"), (0x3600000, 0, 256, 1, "max"), (0x3600000, 0, 256, 4, "max"), (0x3600000, 256, 576, 1, "max"), (0x3600000, 256, 576, 4, "max"),
         (0x3400000, 0, 241, 0, "min"), (0x3400000, 0, 160, 1, "max"), (0x3400000, 0, 160, 4, "max"), (0x3400000, 160, 241, 4, "max"),
         (0x3000000, 0, 224, 0, "min"), (0x3000000, 0, 224, 1, "max"), (0x3000000, 0, 192, 2, "max"), (0x3000000, 0, 224, 4, "max"),
         (0x3200000, 0, 256, 0, "min"), (0x3200000, 0, 256, 2, "max"), (0x3200000, 0, 256, 4, "max")]
NAMES = ["K1 start", "ln data", "ln end", "kg data", "kg end", "K2 start", "conv bar", "conv end", "prep end", "K3 start", "bar0", "loop end(non-light)", "K3 end", "K4 start", "loop end", "K4 end"]
def decode(dbg, items=ITEMS, names=NAMES):
    v = [(~x & 0xffffffff) if it[4] == "min" else x for x, it in zip(dbg, items)]
    return ", ".join("%s %.2f" % (n, (x - v[0]) / 100) for n, x in zip(names, v))
if __name__ == "__main__":
    import sys, json
    if len(sys.argv) > 1:
        print(decode(json.loads(sys.argv[1])))
    else:
        from gen_all import *
        ks = [gen_k1(diag=True, PFM=3), gen_k2(diag=True, prep=prep), gen_k3(diag=True), gen_k4(diag=True, DEPTH=3), gen_sum(ITEMS)]
        open("all_sum.s", "w").write(build(ks, header=HDR))
```

```python
from asmlib import *
from layout import *
from gen_k3 import vr, srd_off, hexf
import math
K1_LDS = 34816
def stamp(k, slot, srd="s[40:43]"):
    k("s_memrealtime s[44:45]\ns_memtime s[48:49]\ns_waitcnt lgkmcnt(0)\nv_mov_b32 v126, s44\nv_mov_b32 v125, s48")
    k(f"buffer_store_dword v126, v127, {srd}, 0 offen offset:{slot*4}")
    k(f"buffer_store_dword v125, v127, {srd}, 0 offen offset:{slot*4+32}")
def stamp_setup(k, base, wave_sreg):
    k(f"s_add_u32 s40, s4, {base}\ns_addc_u32 s41, s5, 0\ns_and_b32 s41, s41, 0xffff\ns_mov_b32 s42, 0x200000\ns_mov_b32 s43, 0x20000")
    k(f"s_lshl_b32 s46, s2, 10\ns_lshl_b32 s47, {wave_sreg}, 6\ns_add_u32 s46, s46, s47\nv_mov_b32 v127, s46")

def ln_role(k, diag, PFM=1):
    PITCH = 1344; ARR = 8 * PITCH + 32
    k(f"s_load_dwordx2 s[6:7], s[0:1], {ARG['x']}")
    k(f"s_load_dwordx4 s[52:55], s[0:1], {ARG['Wg']}\ns_load_dwordx2 s[56:57], s[0:1], {ARG['Wd']}")
    k("v_lshrrev_b32 v2, 5, v0\nv_and_b32 v3, 31, v0\nv_lshlrev_b32 v4, 4, v3")
    k("v_mul_u32_u24 v5, 1280, v2\nv_add_u32 v5, v5, v4")
    k("v_cmp_gt_u32 vcc, 16, v3\nv_add_u32 v6, 1024, v5\nv_mov_b32 v7, 0x7fffffff\ns_mul_i32 s26, s2, 10240\nv_cndmask_b32 v6, v7, v6, vcc")
    k("s_waitcnt lgkmcnt(0)")
    k.srd(8, 6, 2621440)
    k("buffer_load_dwordx4 v[16:19], v5, s[8:11], s26 offen\nbuffer_load_dwordx4 v[20:23], v5, s[8:11], s26 offen offset:512\nbuffer_load_dwordx4 v[24:27], v6, s[8:11], s26 offen")
    k("s_cmp_lt_u32 s2, 68\ns_cselect_b32 s12, s52, s54\ns_cselect_b32 s13, s53, s55\ns_cselect_b32 s27, 0, 68")
    k("s_cmp_lt_u32 s2, 136\ns_cselect_b32 s12, s12, s56\ns_cselect_b32 s13, s13, s57\ns_cselect_b32 s27, s27, 136")
    k("s_and_b32 s13, s13, 0xffff\ns_mov_b32 s14, 2211840\ns_mov_b32 s15, 0x20000\ns_sub_u32 s27, s2, s27\ns_lshl_b32 s27, s27, 15\nv_lshlrev_b32 v8, 7, v0")
    if PFM == 1: k("buffer_load_dword v9, v8, s[12:15], s27 offen")
    k("s_mov_b32 s33, s27")
    if diag:
        stamp_setup(k, 0x3600000, "s25"); stamp(k, 0)
    srd_off(k, 16, WS_CNT, 4096)
    k("s_cmp_eq_u32 s2, 255\ns_cselect_b32 s18, s18, 0\nv_mov_b32 v48, 0\nv_mov_b32 v49, 0\nv_mov_b32 v50, 0\nv_mov_b32 v51, 0\nv_lshlrev_b32 v52, 4, v0")
    k("buffer_store_dwordx4 v[48:51], v52, s[16:19], 0 offen sc1")
    srd_off(k, 16, WS_UX, 160 * 32768)
    k(f"v_mul_u32_u24 v10, {PITCH}, v2\nv_add_u32 v10, v10, v4")
    k(f"v_add_u32 v11, 1024, v10\nv_mov_b32 v7, {2*ARR}\nv_cndmask_b32 v11, v7, v11, vcc")
    k("v_mov_b32 v12, 0\nv_mov_b32 v13, 0\nv_mov_b32 v14, 0x3f803f80")
    k(f"s_waitcnt vmcnt({(2 if diag else 0) + (PFM == 1) + 1})")
    if diag: stamp(k, 1)
    if PFM == 2: k("buffer_load_dword v9, v8, s[12:15], s33 offen")
    k(f"ds_write_b128 v10, v[16:19] offset:{ARR}\nds_write_b128 v10, v[20:23] offset:{ARR+512}\nds_write_b128 v11, v[24:27] offset:{ARR}")
    for r in range(16, 28):
        k(f"v_dot2c_f32_bf16 v12, v{r}, v14\nv_dot2c_f32_bf16 v13, v{r}, v{r}")
    k("s_nop 2")
    for sh in (1, 2, 4, 8):
        k(f"v_add_f32_dpp v12, v12, v12 row_ror:{sh} row_mask:0xf bank_mask:0xf\nv_add_f32_dpp v13, v13, v13 row_ror:{sh} row_mask:0xf bank_mask:0xf\ns_nop 0")
    k("v_mov_b32 v28, v12\nv_mov_b32 v29, v13\ns_nop 1\nv_permlane16_swap_b32 v28, v12\nv_permlane16_swap_b32 v29, v13\ns_nop 1")
    k("v_add_f32 v12, v12, v28\nv_add_f32 v13, v13, v29")
    k(f"v_mul_f32 v12, {hexf(1.0/640)}, v12\nv_mul_f32 v13, {hexf(1.0/640)}, v13\nv_fma_f32 v13, -v12, v12, v13")
    k(f"v_max_f32 v13, 0, v13\nv_add_f32 v13, {hexf(1e-5)}, v13\nv_rsq_f32 v28, v13\ns_nop 0")
    k("v_mul_f32 v30, -v12, v28\nv_mov_b32 v29, v28\nv_mov_b32 v31, v30")
    for r in range(12):
        k(f"v_lshlrev_b32 v32, 16, v{16+r}\nv_and_b32 v33, 0xffff0000, v{16+r}")
        k(f"v_pk_fma_f32 v[32:33], v[32:33], v[28:29], v[30:31]\nv_cvt_pk_bf16_f32 v{36+r}, v32, v33")
        if r == 3: k("ds_write_b128 v10, v[36:39]")
        if r == 7: k("ds_write_b128 v10, v[40:43] offset:512")
    k("ds_write_b128 v11, v[44:47]")
    k(f"v_and_b32 v2, 1, v1\nv_mul_u32_u24 v2, {ARR}, v2\nv_lshrrev_b32 v3, 2, v1\nv_and_b32 v3, 3, v3\nv_mul_u32_u24 v3, {PITCH}, v3\nv_add_u32 v2, v2, v3")
    k("v_lshrrev_b32 v3, 4, v1\nv_lshlrev_b32 v3, 4, v3\nv_and_b32 v4, 2, v1\nv_lshl_add_u32 v3, v4, 2, v3\ns_mul_i32 s27, s25, 320\nv_add3_u32 v2, v2, v3, s27")
    k("v_lshrrev_b32 v3, 3, v1\nv_lshlrev_b32 v3, 15, v3\nv_and_b32 v4, 7, v1\nv_lshl_add_u32 v3, v4, 4, v3")
    k(f"s_mul_i32 s27, s25, {40*32768}\ns_lshl_b32 s28, s2, 7\ns_add_u32 s27, s27, s28")
    k("s_waitcnt lgkmcnt(0)")
    if diag: stamp(k, 2)
    k("s_barrier")
    for it in range(5):
        k(f"ds_read_b64_tr_b16 {vr(48+4*it,2)}, v2 offset:{64*it}\nds_read_b64_tr_b16 {vr(50+4*it,2)}, v2 offset:{64*it+4*PITCH}")
    for it in range(5):
        k(f"s_waitcnt lgkmcnt({2*(4-it)})\nbuffer_store_dwordx4 {vr(48+4*it,4)}, v3, s[16:19], s27 offen sc1\ns_add_u32 s27, s27, {8*32768}")
    if PFM == 3: k("buffer_load_dword v9, v8, s[12:15], s33 offen")
    if diag:
        stamp(k, 3); k("s_waitcnt vmcnt(0)"); stamp(k, 4)
    k("s_endpgm")

def cmul(k, d, z, m, t):
    k(f"v_pk_mul_f32 {vr(t,2)}, {vr(z,2)}, {vr(m,2)} op_sel_hi:[0,1]")
    k(f"v_pk_fma_f32 {vr(d,2)}, {vr(z,2)}, {vr(m,2)}, {vr(t,2)} op_sel:[1,1,0] op_sel_hi:[1,0,1] neg_lo:[0,1,0]")

def kgen_role(k, diag):
    RP = 272; REG = 8704
    k(f"s_load_dwordx8 s[52:59], s[0:1], {ARG['A_re']}\ns_load_dwordx4 s[60:63], s[0:1], {ARG['C_re']}\ns_load_dwordx2 s[6:7], s[0:1], {ARG['log_dt']}")
    k("s_sub_u32 s20, s2, 256\ns_lshl_b32 s20, s20, 1\ns_lshr_b32 s21, s25, 1\ns_add_u32 s20, s20, s21\ns_and_b32 s21, s25, 1")
    k("s_lshl_b32 s22, s20, 8\ns_lshl_b32 s23, s21, 7\ns_add_u32 s22, s22, s23\nv_lshl_add_u32 v2, v1, 1, s22")
    k("s_lshr_b32 s23, s20, 1\ns_lshl_b32 s23, s23, 2")
    k("s_waitcnt lgkmcnt(0)")
    for i in range(6):
        k(f"global_load_ushort v{10+i}, v2, s[{52+2*i}:{53+2*i}]")
    k("s_load_dword s24, s[6:7], s23")
    if diag:
        stamp_setup(k, 0x3600000, "s25"); stamp(k, 0)
    k(f"s_mul_i32 s27, s20, {2*KROWB}\ns_add_u32 s27, s27, {WS_K}")
    srd_off(k, 16, "s27", 2 * KROWB)
    k(f"s_mul_i32 s26, s25, {REG}\ns_mov_b32 m0, s26")
    k(f"v_and_b32 v3, 31, v1\nv_lshrrev_b32 v4, 5, v1\nv_mul_u32_u24 v5, {RP}, v3\nv_lshl_add_u32 v5, v4, 4, v5\nv_add_u32 v5, s26, v5")
    k("s_waitcnt lgkmcnt(0)")
    k("s_and_b32 s23, s20, 1\ns_lshl_b32 s23, s23, 4\ns_lshr_b32 s24, s24, s23\ns_lshl_b32 s24, s24, 16")
    k(f"v_mov_b32 v6, s24\nv_mul_f32 v6, {hexf(math.log2(math.e))}, v6\nv_exp_f32 v6, v6\ns_nop 0\nv_cvt_pk_bf16_f32 v6, v6, v6\nv_and_b32 v6, 0xffff0000, v6")
    k(f"s_waitcnt vmcnt({2 if diag else 0})")
    if diag: stamp(k, 1)
    for i in range(6): k(f"v_lshlrev_b32 v{10+i}, 16, v{10+i}")
    E1, E2, E4, E8, E256, Wc, Bc, Z, T, O = 20, 22, 24, 26, 28, 30, 32, 34, 36, 38
    k(f"v_mul_f32 v10, v6, v10\nv_mul_f32 v11, v6, v11\nv_mul_f32 v10, {hexf(math.log2(math.e))}, v10\nv_mul_f32 v11, {hexf(1/(2*math.pi))}, v11")
    k(f"v_mul_f32 v16, 0x43800000, v10\nv_mul_f32 v17, 0x43800000, v11\nv_fract_f32 v11, v11\nv_fract_f32 v17, v17")
    k(f"v_exp_f32 v10, v10\nv_cos_f32 v{E1}, v11\nv_sin_f32 v{E1+1}, v11\nv_exp_f32 v16, v16\nv_cos_f32 v{E256}, v17\nv_sin_f32 v{E256+1}, v17")
    k(f"v_mul_f32 v{E1}, v10, v{E1}\nv_mul_f32 v{E1+1}, v10, v{E1+1}\nv_mul_f32 v{E256}, v16, v{E256}\nv_mul_f32 v{E256+1}, v16, v{E256+1}")
    cmul(k, E2, E1, E1, T); cmul(k, E4, E2, E2, T); cmul(k, E8, E4, E4, T)
    k(f"v_mov_b32 v{O}, 0x3f80\nds_write_addtid_b32 v{O}")
    k(f"v_cvt_pk_bf16_f32 v{O+1}, v{E8}, -v{E8+1}\nds_write_addtid_b32 v{O+1} offset:{RP}")
    src = E8
    for j in range(2, 32):
        cmul(k, Z, src, E8, T); src = Z
        o = O + (j & 1)
        k(f"v_cvt_pk_bf16_f32 v{o}, v{Z}, -v{Z+1}\nds_write_addtid_b32 v{o} offset:{j*RP}")
    QF = 64
    for s in range(8): k(f"ds_read_b128 {vr(QF+4*s,4)}, v5 offset:{32*s}")
    cmul(k, Wc, 14, 12, T)
    k(f"v_mul_f32 v{Wc}, v6, v{Wc}\nv_mul_f32 v{Wc+1}, v6, v{Wc+1}")
    cnt = [0]
    def put(z, rows):
        o = O + (cnt[0] & 1); cnt[0] += 1
        k(f"v_cvt_pk_bf16_f32 v{o}, v{z}, v{z+1}")
        for r in rows: k(f"ds_write_addtid_b32 v{o} offset:{r*RP}")
    put(Wc, [0]); src = Wc
    for j in range(1, 8):
        cmul(k, Z, src, E1, T); src = Z; put(Z, [j])
    cmul(k, Bc, Wc, E256, T); put(Bc, [8]); src = Bc
    for rows in ([9], [10, 12], [13], [14]):
        cmul(k, Z, src, E2, T); src = Z; put(Z, rows)
    for r0, r1, r2 in (([16], [17, 20], [21]), ([18], [19, 22], [23])):
        cmul(k, Bc, Bc, E256, T); put(Bc, r0)
        cmul(k, Z, Bc, E4, T); put(Z, r1)
        cmul(k, Z, Z, E4, T); put(Z, r2)
    for r in (24, 25, 28, 29, 30):
        cmul(k, Bc, Bc, E256, T); put(Bc, [r])
    PF = 96 - 64 + 64
    ACC = 44
    PF = [96, 100, 104, 108, 112, 116, 120, 10]
    for s in range(8): k(f"ds_read_b128 {vr(PF[s],4)}, v5 offset:{32*s}")
    for s in range(8):
        k(f"s_waitcnt lgkmcnt({7-s})")
        c = "0" if s == 0 else vr(ACC, 16)
        k(f"v_mfma_f32_32x32x16_bf16 {vr(ACC,16)}, {vr(PF[s],4)}, {vr(QF+4*s,4)}, {c}")
    if diag: stamp(k, 2)
    k("v_lshlrev_b32 v7, 4, v1\ns_and_b32 s28, s25, 2\ns_mul_i32 s28, s28, " + str(REG))
    k(f"s_add_u32 s29, s28, {REG}\nv_add_u32 v8, s29, v7\ns_cmp_eq_u32 s21, 0\ns_nop 7\ns_cbranch_scc1 KG_EVEN")
    for i in range(4): k(f"ds_write_b128 v8, {vr(ACC+4*i,4)} offset:{i*1024}")
    k("s_waitcnt lgkmcnt(0)\ns_barrier\ns_branch KG_JOIN")
    k("KG_EVEN:")
    k("s_barrier")
    for i in range(4): k(f"ds_read_b128 {vr(QF+4*i,4)}, v8 offset:{i*1024}")
    k("v_lshlrev_b32 v9, 4, v3\nv_lshlrev_b32 v10, 3, v4\nv_add_u32 v10, v9, v10\ns_add_u32 s29, s28, " + str(4088 - 1536) + "\nv_sub_u32 v10, s29, v10")
    k("v_lshlrev_b32 v11, 10, v4\nv_add_u32 v11, v9, v11\ns_add_u32 s29, s28, " + str(2040 - 512) + "\nv_sub_u32 v11, s29, v11")
    k("v_and_b32 v12, 1, v3\nv_lshlrev_b32 v12, 1, v12\nv_add_u32 v12, v11, v12\nv_subrev_u32 v12, 2, v12")
    k("v_cmp_eq_u32 vcc, 32, v1\nv_mov_b32 v13, s28\nv_add_u32 v14, 4224, v13\nv_mov_b32 v16, 0\nv_cndmask_b32 v13, v14, v13, vcc")
    k("v_mov_b32 v17, 0\nv_and_b32 v14, 7, v1\nv_lshlrev_b32 v14, 3, v14\nv_add_u32 v14, s28, v14")
    k("v_cmp_eq_u32 vcc, 0, v4\ns_waitcnt lgkmcnt(0)")
    for i in range(8): k(f"v_pk_add_f32 {vr(ACC+2*i,2)}, {vr(ACC+2*i,2)}, {vr(QF+2*i,2)}")
    a = lambda i: f"v{ACC+i}"
    k("ds_write_b64 v14, v[16:17] offset:4096")
    for cp in range(2):
        k(f"v_cvt_pk_bf16_f32 v{20+2*cp}, {a(12+cp)}, {a(12+cp)}\nv_mov_b32 v{21+2*cp}, v{20+2*cp}")
        k(f"ds_write_b64 v11, {vr(20+2*cp,2)} offset:{512-512*cp}\nds_write_b64 v11, {vr(20+2*cp,2)} offset:{512-512*cp+8}")
    for cp in range(2):
        k(f"ds_write_b16 v12, v{20+2*cp} offset:{512-512*cp}")
    k(f"v_cvt_pk_bf16_f32 v24, {a(14)}, {a(14)}\nv_mov_b32 v25, v24\nds_write_b64 v13, v[24:25]")
    for c in range(2):
        k(f"v_cndmask_b32 v26, {a(9+2*c)}, {a(8+2*c)}, vcc")
        k(f"v_cvt_pk_bf16_f32 v{28+2*c}, {a(9+2*c)}, v26\nv_cvt_pk_bf16_f32 v{29+2*c}, {a(8+2*c)}, {a(8+2*c)}")
        k(f"ds_write_b64 v10, {vr(28+2*c,2)} offset:{1536-2*(512+256*c)}")
    k(f"v_cvt_pk_bf16_f32 v32, {a(6)}, {a(5)}\nv_cvt_pk_bf16_f32 v33, {a(4)}, {a(4)}\nds_write_b64 v10, v[32:33] offset:{1536-512}")
    k(f"v_cvt_pk_bf16_f32 v34, {a(3)}, {a(2)}\nv_cvt_pk_bf16_f32 v35, {a(1)}, {a(0)}\nds_write_b64 v10, v[34:35] offset:1536")
    k("s_waitcnt lgkmcnt(0)")
    k("KG_JOIN:")
    k("s_barrier")
    k("s_lshl_b32 s29, s21, 11\ns_add_u32 s30, s29, s28\nv_add_u32 v8, s30, v7")
    for i in range(2):
        k(f"ds_read_b128 {vr(64+8*i,4)}, v8 offset:{1024*i}\nds_read_b32 v{68+8*i}, v8 offset:{1024*i+16}")
    k(f"v_mov_b32 v20, 0\nv_mov_b32 v21, 0\nv_mov_b32 v22, 0\nv_mov_b32 v23, 0\ns_add_u32 s30, s29, {KROWB}")
    k(f"v_cmp_gt_u32 vcc, 8, v1\nv_mov_b32 v9, 0x7fffffff\ns_mul_i32 s31, s21, {KROWB}\ns_add_u32 s31, s31, 4096\nv_cndmask_b32 v9, v9, v7, vcc")
    k("buffer_store_dwordx4 v[20:23], v9, s[16:19], s31 offen sc1")
    for i in range(2):
        k(f"s_waitcnt lgkmcnt({2-2*i})")
        b = 64 + 8 * i
        k(f"buffer_store_dwordx4 {vr(b,4)}, v7, s[16:19], s29 offen offset:{1024*i} sc1")
        for j in range(4): k(f"v_alignbit_b32 v{80+4*i+j}, v{b+j+1}, v{b+j}, 16")
        k(f"buffer_store_dwordx4 {vr(80+4*i,4)}, v7, s[16:19], s30 offen offset:{1024*i} sc1")
    if diag:
        stamp(k, 3); k("s_waitcnt vmcnt(0)"); stamp(k, 4)
    k("s_endpgm")

def gen_k1(diag=False, name="prep_kernel", PFM=1):
    k = Kern(name, 576, 256, K1_LDS, vgpr=128, sgpr=72)
    k("s_cmp_ge_u32 s2, 576\ns_cbranch_scc1 K1_END")
    k(f"s_load_dwordx2 s[4:5], s[0:1], {ARG['ws']}")
    k.code_prefetch("K1_END", vdst=124)
    k("v_readfirstlane_b32 s25, v0\nv_and_b32 v1, 63, v0")
    k("s_lshr_b32 s25, s25, 6")
    k("s_cmp_ge_u32 s2, 256\ns_cbranch_scc1 K1_KGEN")
    ln_role(k, diag, PFM)
    k("K1_KGEN:")
    kgen_role(k, diag)
    k("K1_END:")
    k("s_endpgm")
    return k

if __name__ == "__main__":
    for pfm in range(4): open("k1_%d.s" % pfm, "w").write(build([gen_k1(diag=True, PFM=pfm)]))
```

```python
from asmlib import *
from layout import *
from gen_k3 import vr, srd_off, hexf
def ar(a, n=1): return f"a{a}" if n == 1 else f"a[{a}:{a+n-1}]"
def stamp(k, slot):
    k("s_memrealtime s[64:65]\ns_memtime s[68:69]\ns_waitcnt lgkmcnt(0)\nv_mov_b32 v250, s64\nv_mov_b32 v249, s68")
    k(f"buffer_store_dword v250, v251, s[60:63], 0 offen offset:{slot*4}")
    k(f"buffer_store_dword v249, v251, s[60:63], 0 offen offset:{slot*4+32}")
def stamp_setup(k, base):
    k(f"s_add_u32 s60, s4, {base}\ns_addc_u32 s61, s5, 0\ns_and_b32 s61, s61, 0xffff\ns_mov_b32 s62, 0x200000\ns_mov_b32 s63, 0x20000")
    k(f"s_lshl_b32 s66, s2, 10\ns_lshl_b32 s67, s25, 6\ns_add_u32 s66, s66, s67\nv_mov_b32 v251, s66")

SLOT = 24576
def kb_body(k, diag=False, R=4, EXTRA=2, HD=6, P="KB", MAP2="42", ROT=0, N1=20, HF="sc1", SF="sc1", H0=3, X=""):
    NST = 20
    RES = SLOT * R
    ACC = 112; W = [16, 64]; T = [48, 96]
    k("s_and_b32 s20, s2, 7\ns_lshr_b32 s21, s2, 3")
    k("s_and_b32 s22, s20, 3\ns_lshl_b32 s22, s22, 2\ns_and_b32 s24, s21, 3\ns_add_u32 s22, s22, s24")
    k("s_lshr_b32 s23, s20, 2\ns_mul_i32 s23, s23, 7\ns_lshr_b32 s24, s21, 2\ns_add_u32 s23, s23, s24")
    k(f"s_mul_i32 s26, s22, 163840\ns_add_u32 s26, s26, {WS_HT}")
    k(f"s_mul_i32 s27, s23, {W1_NT}\ns_add_u32 s27, s27, {WS_W1}")
    srd_off(k, 8, "s26", 163840)
    srd_off(k, 12, "s27", W1_NT)
    k("s_and_b32 s28, s25, 1\ns_lshr_b32 s29, s25, 1")
    k("s_cmp_eq_u32 s23, 13\ns_cselect_b32 s31, s29, 0\ns_cmp_eq_u32 s31, 1\ns_cselect_b32 s14, 0, s14")
    k("v_lshlrev_b32 v241, 4, v1\nv_lshrrev_b32 v12, 4, v1\nv_lshlrev_b32 v12, 5, v12\nv_xor_b32 v240, v241, v12\nv_xor_b32 v242, 128, v240")
    k("s_lshl_b32 s32, s25, 11\ns_lshl_b32 s33, s25, 12\ns_mov_b32 s37, s32\ns_add_u32 s38, s33, 8192")
    def g2_ids():
        if MAP2 == "42":
            k("s_and_b32 s44, s20, 3\ns_lshl_b32 s44, s44, 3\ns_and_b32 s24, s21, 7\ns_add_u32 s44, s44, s24")
            k("s_lshr_b32 s45, s20, 2\ns_lshl_b32 s45, s45, 2\ns_lshr_b32 s24, s21, 3\ns_add_u32 s45, s45, s24")
            k("s_mul_i32 s51, s24, 7\ns_lshr_b32 s51, s51, 1")
        else:
            k("s_lshl_b32 s44, s20, 2\ns_and_b32 s24, s21, 3\ns_add_u32 s44, s44, s24\ns_lshr_b32 s45, s21, 2")
            k("s_mul_i32 s51, s45, 7\ns_lshr_b32 s51, s51, 2")
        if not ROT: k("s_mov_b32 s51, 0")
        k("s_lshl_b32 s51, s51, 2\ns_add_u32 s51, s51, s25")
        k(f"s_mul_i32 s27, s45, {WD_DT}\ns_add_u32 s27, s27, {WS_WD}")
        srd_off(k, 52, "s27", WD_DT)
        k("s_mul_i32 s50, s51, 5120\nv_add_u32 v243, 4096, v241")
    k(f"s_cmp_ge_u32 s2, 224\ns_cbranch_scc1 {P}_STAT")
    ADV_A = "s_add_u32 s50, s50, 20480" + (f"\ns_cmp_ge_u32 s50, {56*5120}\ns_cselect_b32 s56, {56*5120}, 0\ns_sub_u32 s50, s50, s56\ns_nop 0" if ROT else "")
    ADV_H = "s_add_u32 s32, s32, 16384" + (f"\ns_cmp_ge_u32 s32, {56*4096}\ns_cselect_b32 s56, {56*4096}, 0\ns_sub_u32 s32, s32, s56\ns_nop 0" if ROT else "")
    def areg(s, i): return ar(20 * s + 4 * i, 4) if s < 12 else vr(16 + 20 * (s - 12) + 4 * i, 4)
    aloads = []
    for s in range(14):
        for i in range(5):
            x = f"buffer_load_dwordx4 {areg(s,i)}, " + (f"v241, s[52:55], s50 offen offset:{i*1024}" if i < 4 else "v243, s[52:55], s50 offen\n" + ADV_A)
            aloads.append(x)
    def dma_list(st):
        sl = (st % R) * SLOT
        l = [f"s_add_u32 m0, s37, {sl}", "buffer_load_dwordx4 v240, s[8:11], s32 offen lds", "buffer_load_dwordx4 v242, s[8:11], s32 offen offset:1024 lds",
             f"s_add_u32 m0, s38, {sl}\ns_add_u32 s32, s32, 8192"]
        l += [f"buffer_load_dwordx4 v241, s[12:15], s33 offen offset:{j*1024} lds" for j in range(4)]
        l += ["s_add_u32 s33, s33, 16384"]
        return l
    vm = []
    def emit(x, tag=None):
        k(x)
        for ln in x.split("\n"):
            if ln.startswith("buffer_"): vm.append(tag)
    def wait_for(tag):
        idx = max(i for i, t in enumerate(vm) if t == tag)
        return len(vm) - 1 - idx
    for st in range(R - 1):
        for j, x in enumerate(dma_list(st)):
            emit(x, ("st", st))
            if j == 0: k("s_nop 0")
    g2_ids()
    srd_off(k, 16, WS_HT, 2621440)
    def res_dma():
        k("s_lshr_b32 s26, s44, 1\ns_mul_i32 s26, s26, 163840\ns_mul_i32 s27, s45, 20480\ns_add_u32 s26, s26, s27")
        k("s_and_b32 s27, s44, 1\ns_lshl_b32 s27, s27, 7\ns_add_u32 s26, s26, s27\ns_lshl_b32 s27, s25, 5\ns_add_u32 s26, s26, s27")
        k("v_lshrrev_b32 v10, 1, v1\nv_lshlrev_b32 v10, 8, v10\nv_and_b32 v11, 1, v1\nv_lshl_add_u32 v10, v11, 4, v10")
        k(f"s_mul_i32 s46, s25, 3072\ns_add_u32 s46, s46, {RES}")
        for j in range(3):
            emit(f"s_add_u32 m0, s46, {j*1024}\ns_nop 0\nbuffer_load_dwordx4 v10, s[16:19], s26 offen lds\ns_add_u32 s26, s26, 8192", "res")
    k("v_lshrrev_b32 v10, 2, v1")
    k("v_and_b32 v11, 7, v10\ns_lshl_b32 s30, s28, 2\nv_xor_b32 v11, s30, v11\nv_lshlrev_b32 v11, 5, v11")
    k("v_lshl_add_u32 v11, v10, 8, v11\nv_and_b32 v10, 3, v1")
    TA = [[2, 3, 4, 5], [6, 7, 8, 9], [244, 245, 246, 247]]; WA = [12, 13, 248]
    k(f"v_lshl_add_u32 v2, v10, 3, v11")
    for tau in range(1, 4): k(f"v_xor_b32 v{TA[0][tau]}, {32*tau}, v2")
    k(f"s_lshl_b32 s30, s29, 13\ns_add_u32 s30, s30, 8192\nv_add_u32 v12, s30, v241")
    for b in range(1, (R + 1) // 2):
        for tau in range(4): k(f"v_add_u32 v{TA[b][tau]}, {2*SLOT*b}, v{TA[0][tau]}")
        k(f"v_add_u32 v{WA[b]}, {2*SLOT*b}, v12")
    def reads(st):
        s = st & 1; sl = st % R; b = sl // 2; o = (sl & 1) * SLOT
        r = [f"ds_read_b64_tr_b16 {vr(T[s]+4*tau+2*half, 2)}, v{TA[b][tau]} offset:{o+4096*half}" for tau in range(4) for half in range(2)]
        w = [f"ds_read_b128 {vr(W[s]+4*v, 4)}, v{WA[b]} offset:{o+v*1024}" for v in range(8)]
        return [w[0]] + r + w[1:]
    def epi_tile(grp, tau):
        a = ACC + 64 * grp + 4 * tau
        l = []
        for hi in range(2):
            for j in range(2): l.append(f"v_pk_mul_f32 {vr(a+16*hi+2*j,2)}, {vr(a+16*hi+2*j,2)}, {vr(a+32+16*hi+2*j,2)}")
        for hi in range(2):
            for j in range(2): l.append(f"v_cvt_pk_bf16_f32 v{a+32+2*hi+j}, v{a+16*hi+2*j}, v{a+16*hi+2*j+1}")
        l.append(f"buffer_store_dwordx4 {vr(a+32,4)}, v241, s[16:19], s{26+grp} offen offset:{tau*1024} {SF}")
        return l
    k(f"s_waitcnt vmcnt({wait_for(('st',0))})\ns_barrier")
    if diag: stamp(k, 1); vm.extend([None, None])
    for r in reads(0): k(r)
    for j, x in enumerate(dma_list(R - 1)):
        emit(x, ("st", R - 1))
        if j == 0: k("s_nop 0")
    res_dma()
    k(f"s_waitcnt vmcnt({wait_for(('st',1))}) lgkmcnt(0)\ns_barrier")
    k(".p2align 3")
    DPOS = [1, 2, 7, 11, 12, 17, 22, 27, 28]
    XPOS = {0: [], 1: [14], 2: [5, 19], 3: [5, 14, 24], 4: [4, 9, 19, 24]}[EXTRA]
    for st in range(NST):
        ms = st & 1
        fill = [[] for _ in range(32)]
        if st + 1 < NST:
            for i, x in enumerate(reads(st + 1)): fill[i].append((x, None))
        if st + R < NST:
            for p, x in zip(DPOS, dma_list(st + R)): fill[p].append((x, ("st", st + R)))
            xp = XPOS
        else:
            xp = [2, 7, 12, 17, 22, 27] if st + 1 < NST else []
        for p in xp:
            if len(aloads) > 10: fill[p].append((aloads.pop(0), "A"))
        if st + 1 == NST:
            fill[0].append((f"s_add_u32 s16, s4, {WS_H}\ns_addc_u32 s17, s5, 0", None))
            fill[1].append((f"s_and_b32 s17, s17, 0xffff\ns_mov_b32 s18, {32*H_T64}", None))
            fill[2].append(("s_cmp_eq_u32 s31, 1\ns_cselect_b32 s18, 0, s18", None))
            fill[3].append(("s_lshl_b32 s26, s22, 1\ns_add_u32 s26, s26, s28", None))
            fill[4].append((f"s_mul_i32 s26, s26, {H_T64}", None))
            fill[5].append(("s_lshl_b32 s27, s23, 14\ns_add_u32 s26, s26, s27", None))
            fill[6].append(("s_lshl_b32 s27, s29, 13\ns_add_u32 s26, s26, s27", None))
            fill[7].append(("s_add_u32 s27, s26, 4096", None))
            e = [x for tau in range(4) for x in epi_tile(0, tau)]
            for i in range(22, 32):
                for _ in range(2): fill[i].append((e.pop(0), "H"))
            rest = e
        n = 0
        for v in range(8):
            for tau in range(4):
                a = ACC + 16 * v + 4 * tau
                k(f"v_mfma_f32_16x16x32_bf16 {vr(a,4)}, {vr(W[ms]+4*v,4)}, {vr(T[ms]+4*tau,4)}, {vr(a,4) if st else 0}")
                for x, tg in fill[n]: emit(x, tg)
                if n == 30 and st + 1 < NST:
                    wv = wait_for(("st", st + 2)) if st + 2 < NST else 63
                    k(f"s_waitcnt vmcnt({min(wv,63)}) lgkmcnt(0)")
                n += 1
        if st + 1 < NST: k("s_barrier")
    if diag: stamp(k, 2)
    for x in rest: k(x)
    for tau in range(4):
        for x in epi_tile(1, tau): k(x)
    k(f"s_lshl_b32 s47, s22, 8")
    k(f"s_branch {P}_ARRIVE")
    k(f"{P}_STAT:")
    g2_ids()
    srd_off(k, 16, WS_HT, 2621440)
    k("s_sub_u32 s22, s2, 224\ns_lshr_b32 s26, s22, 1\ns_mul_i32 s26, s26, 163840\ns_and_b32 s27, s22, 1\ns_lshl_b32 s27, s27, 7\ns_add_u32 s26, s26, s27")
    k(f"s_mul_i32 s27, s25, {160*256}\ns_add_u32 s26, s26, s27")
    k("v_lshrrev_b32 v10, 3, v1\nv_lshlrev_b32 v10, 8, v10\nv_and_b32 v11, 7, v1\nv_lshl_add_u32 v10, v11, 4, v10")
    for i in range(20):
        k(f"buffer_load_dwordx4 {vr(112+4*i,4)}, v10, s[16:19], s26 offen offset:{(i&1)*2048}" + ("\ns_add_u32 s26, s26, 4096" if i & 1 else ""))
    res_dma()
    for r in range(16, 32): k(f"v_mov_b32 v{r}, 0")
    for i in range(20):
        k(f"s_waitcnt vmcnt({19-i+3})")
        for j in range(4):
            w = 112 + 4 * i + j
            k(f"v_lshlrev_b32 v32, 16, v{w}\nv_and_b32 v33, 0xffff0000, v{w}")
            k(f"v_pk_add_f32 {vr(16+2*j,2)}, {vr(16+2*j,2)}, v[32:33]\nv_pk_fma_f32 {vr(24+2*j,2)}, v[32:33], v[32:33], {vr(24+2*j,2)}")
    k("v_lshlrev_b32 v10, 6, v0")
    for j in range(4): k(f"ds_write_b128 v10, {vr(16+4*j,4)} offset:{16*j}")
    k("s_waitcnt lgkmcnt(0)\ns_barrier")
    k("v_lshrrev_b32 v10, 3, v1\nv_lshlrev_b32 v10, 6, v10\nv_and_b32 v11, 7, v1\nv_lshl_add_u32 v10, v11, 2, v10")
    k("v_mov_b32 v16, 0\nv_mov_b32 v17, 0")
    for g in range(4):
        for s in range(8): k(f"ds_read2_b32 {vr(32+2*s,2)}, v10 offset0:0 offset1:8\nv_add_u32 v10, 512, v10")
        k("s_waitcnt lgkmcnt(0)")
        for s in range(8): k(f"v_pk_add_f32 v[16:17], v[16:17], {vr(32+2*s,2)}")
    k(f"v_mul_f32 v16, {hexf(1.0/640)}, v16\nv_mul_f32 v17, {hexf(1.0/640)}, v17\nv_fma_f32 v17, -v16, v16, v17")
    k(f"v_max_f32 v17, 0, v17\nv_add_f32 v17, {hexf(1e-5)}, v17\nv_rcp_f32 v17, v17")
    srd_off(k, 16, WS_RS, 8192)
    k("s_cmp_eq_u32 s25, 0\ns_cselect_b32 s18, s18, 0\ns_lshl_b32 s26, s22, 8\nv_lshlrev_b32 v10, 2, v1")
    k("buffer_store_dword v17, v10, s[16:19], s26 offen sc1")
    k("s_lshr_b32 s47, s22, 1\ns_lshl_b32 s47, s47, 8")
    nin = 70 - len(aloads)
    al2 = []
    for s in range(14):
        for i in range(5):
            al2.append(f"buffer_load_dwordx4 {areg(s,i)}, " + (f"v241, s[52:55], s50 offen offset:{i*1024}" if i < 4 else "v243, s[52:55], s50 offen\n" + ADV_A))
    for x in al2[:nin]: k(x)
    k(f"{P}_ARRIVE:")
    srd_off(k, 12, WS_CNT, 8192)
    n1 = min(N1, len(aloads))
    for x in aloads[:n1]: k(x)
    aloads = aloads[n1:]
    k(f"s_waitcnt vmcnt({n1})\ns_barrier")
    if diag: stamp(k, 4)
    k(f"s_cmp_lg_u32 s25, 0\ns_cbranch_scc1 {P}_NOSIG")
    k("s_mov_b64 exec, 1\nv_mov_b32 v10, 1\nv_mov_b32 v11, 0\nbuffer_atomic_add v10, v11, s[12:15], s47 offen sc1\ns_mov_b64 exec, -1")
    k(f"{P}_NOSIG:")
    for x in aloads: k(x)
    k(f"s_mul_i32 s26, s44, {H_T64}\ns_add_u32 s26, s26, {WS_H}")
    srd_off(k, 8, "s26", 0 if "z" in X else H_T64)
    srd_off(k, 36, WS_RS, 8192)
    for tp in range(4):
        k(f"s_add_u32 s28, s25, {tp}\ns_and_b32 s28, s28, 3\ns_lshl_b32 s28, s28, 10\nv_add_u32 v{4+tp}, s28, v241")
    G = 56
    HB = 136
    k("s_lshl_b32 s32, s51, 12\ns_lshr_b32 s47, s44, 1\ns_lshl_b32 s47, s47, 8")
    k(f"s_cmp_lg_u32 s25, 0\ns_cbranch_scc1 {P}_GO")
    k("v_mov_b32 v11, 0\ns_mov_b32 s48, 0")
    k(f"{P}_POLL:")
    k("buffer_load_dword v10, v11, s[12:15], s47 offen sc0 sc1\ns_waitcnt vmcnt(0)\nv_readfirstlane_b32 s49, v10")
    k(f"s_add_u32 s48, s48, 1\ns_cmp_ge_u32 s49, 16\ns_cbranch_scc1 {P}_GO")
    k(f"s_sleep 1\ns_cmp_lt_u32 s48, 0x400000\ns_cbranch_scc1 {P}_POLL")
    k(f"{P}_GO:")
    k("s_barrier")
    if diag: stamp(k, 5)
    def hloads(b):
        for tp in range(4): k(f"buffer_load_dwordx4 {vr(HB+16*b+4*tp,4)}, v{4+tp}, s[8:11], s32 offen {HF}")
        k(ADV_H)
    NS = 14
    vm2 = []
    def hl(s, tp):
        if not ("n" in X and s >= H0): k(f"buffer_load_dwordx4 {vr(HB+16*(s%HD)+4*tp,4)}, v{4+tp}, s[8:11], s32 offen {HF}")
        vm2.append(s)
        if tp == 3: k(ADV_H)
    nxt = [0]
    def issue_next():
        s_, tp_ = divmod(nxt[0], 4); hl(s_, tp_); nxt[0] += 1
    for _ in range(4 * min(H0, 2)): issue_next()
    k("s_lshl_b32 s28, s44, 8\ns_lshl_b32 s30, s25, 6\ns_add_u32 s28, s28, s30\nv_and_b32 v11, 15, v1\nv_lshlrev_b32 v12, 2, v11")
    k("buffer_load_dword v13, v12, s[36:39], s28 offen sc1"); vm2.append(-1)
    for tp in range(1, 4):
        k(f"s_add_u32 s28, s25, {tp}\ns_and_b32 s28, s28, 3\ns_mul_i32 s28, s28, 15360\ns_add_u32 s28, s28, {(tp-1)*5120}\nv_add_u32 v{243+tp}, s28, v241")
    k("s_mul_i32 s28, s25, 15360\nv_add_u32 v14, s28, v241")
    k("v_lshrrev_b32 v8, 4, v1\nv_mul_u32_u24 v8, 20, v8\nv_lshrrev_b32 v9, 2, v1\nv_and_b32 v9, 3, v9\nv_add_u32 v8, v8, v9")
    k("v_lshlrev_b32 v8, 5, v8\nv_and_b32 v9, 3, v1\nv_lshl_add_u32 v8, v9, 3, v8\nv_add_u32 v8, s46, v8")
    k("s_lshl_b32 s28, s44, 6\ns_lshl_b32 s30, s25, 4\ns_add_u32 s28, s28, s30\ns_mul_i32 s28, s28, 1280\ns_mul_i32 s30, s45, 160\ns_add_u32 s28, s28, s30")
    k("v_mul_u32_u24 v11, 1280, v11\nv_lshrrev_b32 v12, 4, v1\nv_mul_u32_u24 v12, 40, v12\nv_add_u32 v11, v11, v12")
    k.srd(16, 6, 2621440)
    for _ in range(4 * (H0 - min(H0, 2))): issue_next()
    k(".p2align 3")
    for s in range(NS):
        idx = max(i for i, t in enumerate(vm2) if t == s)
        k(f"s_waitcnt vmcnt({len(vm2)-1-idx})\ns_nop 0")
        if diag and s == 0:
            stamp(k, 3); vm2.extend([-1, -1])
        hb = HB + 16 * (s % HD)
        order = [0, 1, 2, 3] if s < NS - 1 else [3, 2, 1, 0]
        pend = []
        for tp in order:
            for i in range(5):
                a = G + 20 * tp + 4 * i
                k(f"v_mfma_f32_16x16x32_bf16 {vr(a,4)}, {areg(s,i)}, {vr(hb+4*tp,4)}, {vr(a,4) if s else 0}")
                if s == NS - 1:
                    if tp: pend.append(f"ds_write_b128 v{243+tp}, {vr(a,4)} offset:{i*1024}")
                    if len(pend) > 8: k(pend.pop(0))
                if i in (1, 4) and nxt[0] < 4 * NS:
                    ns, ntp = divmod(nxt[0], 4)
                    prev = ns - HD
                    if prev < s or (prev == s and (ntp < tp or (ntp == tp and i == 4))): issue_next()
    k("s_nop 3")
    if diag: k("s_memtime s[70:71]")
    for x in pend: k(x)
    if diag:
        stamp(k, 6)
        k("v_mov_b32 v249, s70\nbuffer_store_dword v249, v251, s[60:63], 0 offen offset:32")
    for i in range(5): k(f"ds_read_b64_tr_b16 {vr(20+2*i,2)}, v8 offset:{i*128}")
    k("s_waitcnt lgkmcnt(0)\ns_barrier")
    for sl in range(3):
        for i in range(5):
            k(f"ds_read_b128 {vr(HB+20*sl+4*i,4)}, v14 offset:{sl*5120+i*1024}")
    for r in range(10):
        k(f"v_lshlrev_b32 v{200+2*r}, 16, v{20+r}\nv_and_b32 v{201+2*r}, 0xffff0000, v{20+r}")
    k("v_mov_b32 v12, v13")
    for sl in range(3):
        k(f"s_waitcnt lgkmcnt({5*(2-sl)})")
        for r in range(0, 20, 2):
            k(f"v_pk_add_f32 {vr(G+r,2)}, {vr(G+r,2)}, {vr(HB+20*sl+r,2)}")
    for r in range(0, 20, 2):
        k(f"v_pk_fma_f32 {vr(G+r,2)}, {vr(G+r,2)}, v[12:13], {vr(200+r,2)}")
        k(f"v_cvt_pk_bf16_f32 v{32+r//2}, v{G+r}, v{G+r+1}")
    k(f"buffer_store_dwordx4 v[32:35], v11, s[16:19], s28 offen")
    k(f"buffer_store_dwordx4 v[36:39], v11, s[16:19], s28 offen offset:16")
    k(f"buffer_store_dwordx2 v[40:41], v11, s[16:19], s28 offen offset:32")
    if diag:
        k("s_waitcnt vmcnt(0)")
        stamp(k, 7)

def gen_kb(diag=False, name="ffn_kernel", R=4, EXTRA=1, HD=6, **kw):
    if diag: HD = min(HD, 6)
    k = Kern(name, 256, 256, SLOT * R + 4 * 3072, vgpr=512, sgpr=80, accum=256)
    k("s_cmp_ge_u32 s2, 256\ns_cbranch_scc1 KB_END")
    k(f"s_load_dwordx2 s[4:5], s[0:1], {ARG['ws']}\ns_load_dwordx2 s[6:7], s[0:1], {ARG['out']}")
    k.code_prefetch("KB_END", vdst=255, stride=7)
    k("v_readfirstlane_b32 s25, v0\nv_and_b32 v1, 63, v0\ns_lshr_b32 s25, s25, 6\ns_waitcnt lgkmcnt(0)")
    if diag:
        stamp_setup(k, 0x3000000); stamp(k, 0)
    kb_body(k, diag, R, EXTRA, HD, **kw)
    k("KB_END:")
    k("s_endpgm")
    return k

def gen_zero():
    z = Kern("zero_kernel", 1, 256, 0, vgpr=16, sgpr=32)
    z("s_cmp_ge_u32 s2, 1\ns_cbranch_scc1 Z_END")
    z(f"s_load_dwordx2 s[4:5], s[0:1], {ARG['ws']}\ns_waitcnt lgkmcnt(0)")
    srd_off(z, 8, WS_CNT, 8192)
    z("v_lshlrev_b32 v1, 4, v0\nv_mov_b32 v4, 0\nv_mov_b32 v5, 0\nv_mov_b32 v6, 0\nv_mov_b32 v7, 0\nbuffer_store_dwordx4 v[4:7], v1, s[8:11], 0 offen sc1\nZ_END:\ns_endpgm")
    return z
if __name__ == "__main__":
    open(f"kb_a.s", "w").write(build([gen_zero(), gen_kb(diag=True)]))
    open(f"kb_b.s", "w").write(build([gen_zero(), gen_kb(diag=True, X="z")]))
    open(f"kb_c.s", "w").write(build([gen_zero(), gen_kb(diag=True, X="n")]))
    open(f"kb_d.s", "w").write(build([gen_zero(), gen_kb(diag=True, MAP2="81")]))
```

```python
import sys
from asmlib import *
from gen_k1 import gen_k1
from gen_k2 import gen_k2
from gen_prep import prep
from gen_k3 import gen_k3
from gen_k4 import gen_k4
from gen_kb import gen_kb
HDR = open("cdna_kernels/" + KN + ".s.ref").read().split("; Override launch")[0]
def make(diag=False, PFM=3, extra_empty=0, **kw):
    ks = [gen_k1(diag=diag, PFM=PFM), gen_k2(diag=diag, prep=prep), gen_k3(diag=diag), gen_k4(diag=diag, DEPTH=3)]
    order = list(ks)
    if extra_empty:
        e = Kern("nop_kernel", 256, 256, 0, vgpr=16, sgpr=16); e("s_endpgm"); ks.append(e); order += [e] * extra_empty
    return build(ks, order=order, header=HDR)
def make3(diag=False, PFM=3, **kw):
    ks = [gen_k1(diag=diag, PFM=PFM), gen_k2(diag=diag, prep=prep), gen_kb(diag=diag, **kw)]
    return build(ks, header=HDR)
if __name__ == "__main__":
    open("v3_a.s", "w").write(make3())
    open("v3_b.s", "w").write(make3(MAP2="81"))
    open("v3_c.s", "w").write(make3(PFM=0))

    open("all.s", "w").write(make())
    open("all_diag.s", "w").write(make(diag=True))
    open("all_pf0.s", "w").write(make(PFM=0))
    open("all_e4.s", "w").write(make(extra_empty=4))
```

```python
import numpy as np
L, D, N, F = 2048, 640, 128, 1728
WS_UX = 0x000000
WS_K  = 0x600000
KROWB = 4224
WS_HT = 0xC00000
WS_RS = 0xE90000
WS_M  = 0xE94000
WS_CS = 0xE98000
WS_CNT = 0xEA0000
WS_ST = 0xEB0000
WS_W1 = 0xF00000
W1_NT = 20 * 16384
WS_WD = 0x1400000
WD_DT = 54 * 5 * 1024
WS_H  = 0x1700000
H_T64 = 54 * 4096
WS_END = WS_H + 32 * H_T64
def bf2f(x): return (np.asarray(x).astype(np.uint32) << 16).view(np.float32)
def f2bf(x):
    u = np.ascontiguousarray(x, dtype=np.float32).view(np.uint32)
    return ((u + 0x7FFF + ((u >> 16) & 1)) >> 16).astype(np.uint16)
def mk_HT(h_bf):
    return np.ascontiguousarray(h_bf.reshape(16, 128, 640).transpose(0, 2, 1))
def center(W):
    w = bf2f(W); return f2bf(w - w.mean(0, keepdims=True, dtype=np.float64).astype(np.float32))
def mk_W1(Wg, Wu):
    Wp = np.zeros((2, 640, 14 * 128), np.uint16)
    Wp[0, :, :F] = Wg; Wp[1, :, :F] = Wu
    out = np.zeros((14, 20, 4, 4, 64, 8), np.uint16)
    lane = np.arange(64); row = lane & 15; g = lane >> 4
    kk = np.concatenate([4 * g[:, None] + np.arange(4), 16 + 4 * g[:, None] + np.arange(4)], 1)
    for G in range(56):
        nt, grp = divmod(G, 4)
        for tile in range(4):
            f = 32 * G + 8 * (row >> 2) + 4 * (tile & 1) + (row & 3)
            cols = Wp[tile >> 1][:, f].T.reshape(64, 20, 32)
            out[nt, :, grp, tile] = np.take_along_axis(cols, np.broadcast_to(kk[:, None, :], (64, 20, 8)), 2).transpose(1, 0, 2)
    return out
def mk_WD(Wd):
    out = np.zeros((8, 54, 5, 64, 8), np.uint16)
    lane = np.arange(64); row = lane & 15; g = lane >> 4
    for dt in range(8):
        for i in range(5):
            d = 80 * dt + 20 * (row >> 2) + 4 * i + (row & 3)
            cols = Wd[:, d].T.reshape(64, 54, 4, 8)
            out[dt, :, i] = cols[lane, :, g, :].transpose(1, 0, 2)
    return out
def mk_H(Hm):
    return np.ascontiguousarray(Hm.reshape(32, 4, 16, 54, 4, 8).transpose(0, 3, 1, 4, 2, 5))
def un_H(buf):
    return buf.reshape(32, 54, 4, 4, 16, 8).transpose(0, 2, 4, 1, 3, 5).reshape(2048, 1728)
def mk_UX(u_bf, x_bf):
    a = np.stack([u_bf, x_bf])
    return np.ascontiguousarray(a.reshape(2, 256, 8, 160, 4).transpose(3, 1, 0, 4, 2))
def ln(x):
    x = x.astype(np.float64); m = x.mean(-1, keepdims=True); v = x.var(-1, keepdims=True)
    return (x - m) / np.sqrt(v + 1e-5)
def lround():
    l = np.arange(2048, dtype=np.float32)
    return bf2f(f2bf(l)).astype(np.int64)
def mk_Kfull(I):
    dt = bf2f(f2bf(np.exp(bf2f(I["A_log_dt"]).astype(np.float64)).astype(np.float32))).astype(np.float64)[:, None]
    A = bf2f(I["A_A_re"]).astype(np.float64) + 1j * bf2f(I["A_A_im"])
    W = (bf2f(I["A_C_re"]).astype(np.float64) + 1j * bf2f(I["A_C_im"])) * (bf2f(I["A_B_re"]).astype(np.float64) + 1j * bf2f(I["A_B_im"])) * dt
    lr = lround(); vs = np.unique(lr)
    Kv = np.empty((640, len(vs)))
    for d0 in range(0, 640, 64):
        P = np.exp((dt * A)[d0:d0+64, :, None] * vs[None, None, :])
        Kv[d0:d0+64] = np.einsum("dn,dnl->dl", W[d0:d0+64], P).real
    return Kv[:, np.searchsorted(vs, lr)]
def mk_K(Kfull):
    kb = f2bf(Kfull.astype(np.float32))
    out = np.zeros((640, 2, KROWB // 2), np.uint16)
    out[:, 0, :2048] = kb[:, ::-1]
    out[:, 1, :2047] = kb[:, ::-1][:, 1:]
    return out
def conv_ref(Kf, u):
    Y = np.fft.irfft(np.fft.rfft(Kf, 4096, axis=1) * np.fft.rfft(u.T, 4096, axis=1), 4096, axis=1)[:, :2048]
    return Y.T
def un_HT(buf): return buf.reshape(16, 640, 128).transpose(0, 2, 1).reshape(2048, 640)

def mk_WD2(Wd):
    out = np.zeros((8, 54, 5, 64, 8), np.uint16)
    lane = np.arange(64); row = lane & 15; g = lane >> 4
    kk = np.concatenate([4 * g[:, None] + np.arange(4), 16 + 4 * g[:, None] + np.arange(4)], 1)
    for dt in range(8):
        for i in range(5):
            d = 80 * dt + 20 * (row >> 2) + 4 * i + (row & 3)
            cols = Wd[:, d].T.reshape(64, 54, 32)
            out[dt, :, i] = np.take_along_axis(cols, np.broadcast_to(kk[:, None, :], (64, 54, 8)), 2).transpose(1, 0, 2)
    return out
def un_H2(buf):
    a = buf.reshape(32, 54, 4, 4, 16, 2, 4)
    return a.transpose(0, 2, 4, 1, 5, 3, 6).reshape(2048, 1728)
```

```python
from asmlib import *
from layout import *
import struct, math
def hexf(x): return "0x%08x" % struct.unpack("<I", struct.pack("<f", x))[0]
def vr(a, n=1): return f"v{a}" if n == 1 else f"v[{a}:{a+n-1}]"
def srd_off(k, d, off, size):
    k(f"s_add_u32 s{d}, s4, {off}\ns_addc_u32 s{d+1}, s5, 0\ns_and_b32 s{d+1}, s{d+1}, 0xffff\ns_mov_b32 s{d+2}, {size}\ns_mov_b32 s{d+3}, 0x20000")
STAMP_BASE = 0x3000000
def stamp_setup(k): pass
def stamp(k, slot):
    k(f"s_memrealtime s[94:95]\ns_memtime s[96:97]\ns_waitcnt lgkmcnt(0)\nv_writelane_b32 v254, s94, {2*slot}\nv_writelane_b32 v254, s96, {2*slot+1}")
def stamp_flush(k):
    k(f"s_add_u32 s88, s4, {STAMP_BASE}\ns_addc_u32 s89, s5, 0\ns_and_b32 s89, s89, 0xffff\ns_mov_b32 s90, 0x200000\ns_mov_b32 s91, 0x20000")
    k("s_lshl_b32 s92, s2, 10\ns_lshl_b32 s93, s24, 7\ns_add_u32 s92, s92, s93\nv_lshlrev_b32 v253, 2, v1\ns_mov_b64 exec, 0xffffffff")
    k("buffer_store_dword v254, v253, s[88:91], s92 offen")
class VM:
    def __init__(s, k): s.k = k; s.q = []
    def __call__(s, txt, tag=None):
        s.k(txt)
        for ln in txt.split("\n"):
            if ln.strip().startswith(("buffer_", "global_")): s.q.append(tag)
    def n_after(s, tag):
        idx = max(i for i, t in enumerate(s.q) if t == tag)
        return len(s.q) - 1 - idx
    def wait(s, tag, extra=""):
        n = s.n_after(tag); assert n <= 63, n
        s.k(f"s_waitcnt vmcnt({n}){extra}")
    def stamp(s, slot): stamp(s.k, slot)
def cmul(k, d, z, m, t):
    k(f"v_pk_mul_f32 {vr(t,2)}, {vr(z,2)}, {vr(m,2)} op_sel_hi:[0,1]")
    k(f"v_pk_fma_f32 {vr(d,2)}, {vr(z,2)}, {vr(m,2)}, {vr(t,2)} op_sel:[1,1,0] op_sel_hi:[1,0,1] neg_lo:[0,1,0]")
C_S3 = 0
C_S2 = 16
C_WD = 32
C_CS = 34
C_M  = 36
NCNT = 52
SPIN = 0x40000
```

```python
from m8_common import *
SLOT = 24576; R = 4; NST = 20
RES = 0; CSM = 12288; M8_LDS = 163840
SLB = [112640, 137216, 16384, 40960]
HB0 = 16384; HSL = 16384; NHS = 9; RED = HB0 + 5 * HSL; NRD = 14

MAP2 = "42"
S2SL = 4
def tile_ids(k):
    k("s_and_b32 s22, s20, 3\ns_lshl_b32 s22, s22, 2\ns_and_b32 s26, s21, 3\ns_add_u32 s22, s22, s26")
    k("s_lshr_b32 s23, s20, 2\ns_mul_i32 s23, s23, 7\ns_lshr_b32 s26, s21, 2\ns_add_u32 s23, s23, s26")
    if MAP2 == "81":
        k("s_lshl_b32 s44, s20, 2\ns_and_b32 s26, s21, 3\ns_add_u32 s44, s44, s26\ns_lshr_b32 s45, s21, 2")
    else:
        k("s_and_b32 s44, s20, 3\ns_lshl_b32 s44, s44, 3\ns_and_b32 s26, s21, 7\ns_add_u32 s44, s44, s26")
        k("s_lshr_b32 s45, s20, 2\ns_lshl_b32 s45, s45, 2\ns_lshr_b32 s26, s21, 3\ns_add_u32 s45, s45, s26")
    k(f"s_mul_i32 s27, s45, {WD_DT}\ns_add_u32 s27, s27, {WS_WD}")
    srd_off(k, 52, "s27", WD_DT)
    srd_off(k, 40, WS_RS, 0xC000)
    k("v_lshlrev_b32 v6, 4, v1")

def a_loads(isL):
    l = []
    for s in range(NRD):
        if isL:
            for i in range(3): l.append(f"buffer_load_dwordx4 {vr(64+12*s+4*i,4)}, v6, s[52:55], s50 offen offset:{i*1024} sc1" + ("\ns_add_u32 s50, s50, 20480" if i == 2 else ""))
        else:
            for i in range(2): l.append(f"buffer_load_dwordx4 {vr(16+8*s+4*i,4)}, v6, s[52:55], s50 offen offset:{i*1024} sc1" + ("\ns_add_u32 s50, s50, 20480" if i == 1 else ""))
    return l

def poll_vec(k, vm, name, cnt0, n, need_reg, issue=True, check=True, tag="pw"):
    if issue: vm(f"buffer_load_dword v9, v8, s[36:39], 0 offen sc1", tag)
    if check:
        vm.wait(tag)
        k(f"s_mov_b32 s48, 0\n{name}:\nv_cmp_gt_u32 vcc, {need_reg}, v9\ns_add_u32 s48, s48, 1\ns_cbranch_vccz {name}_OK")
        k(f"s_sleep 4\nbuffer_load_dword v9, v8, s[36:39], 0 offen sc1\ns_cmp_lt_u32 s48, {SPIN}\ns_waitcnt vmcnt(0)\ns_cbranch_scc1 {name}\n{name}_OK:")

def res_dma(k, vm):
    srd_off(k, 56, WS_HT, 2621440)
    k("s_lshr_b32 s26, s44, 1\ns_mul_i32 s26, s26, 163840\ns_mul_i32 s27, s45, 20480\ns_add_u32 s26, s26, s27")
    k(f"s_and_b32 s27, s44, 1\ns_lshl_b32 s27, s27, 7\ns_add_u32 s26, s26, s27\ns_mul_i32 s27, s25, {24*256}\ns_add_u32 s26, s26, s27")
    k("v_lshrrev_b32 v10, 3, v1\nv_lshlrev_b32 v10, 8, v10\nv_and_b32 v11, 7, v1\nv_lshl_add_u32 v10, v11, 4, v10")
    k(f"s_mul_i32 s46, s25, 3072\ns_add_u32 s46, s46, {RES}")
    for j in range(3):
        vm(f"s_add_u32 m0, s46, {j*1024}\ns_nop 0\nbuffer_load_dwordx4 v10, s[56:59], s26 offen sc1 lds\ns_add_u32 s26, s26, 2048", "res")

def wpoll_prep(k, c):
    k(f"v_and_b32 v8, 1, v1\nv_lshlrev_b32 v8, 8, v8\nv_add_u32 v8, {c*256}, v8\nv_mov_b32 v7, 27")

def wd_wait(k, name):
    from m8_ssm import FLG
    k(f"v_mov_b32 v10, {FLG}\ns_cmp_lg_u32 s24, 0\ns_cbranch_scc1 {name}_L")
    wpoll_prep(k, C_WD)
    k(f"s_mov_b32 s48, 0\n{name}:\nbuffer_load_dword v9, v8, s[36:39], 0 offen sc1\ns_add_u32 s48, s48, 1\ns_waitcnt vmcnt(0)")
    k(f"v_cmp_gt_u32 vcc, v7, v9\ns_cbranch_vccz {name}_S\ns_sleep 16\ns_cmp_lt_u32 s48, {SPIN}\ns_cbranch_scc1 {name}")
    k(f"{name}_S:\nds_write_b32 v10, v7 offset:24\ns_branch {name}_OK")
    k(f"{name}_L:\ns_sleep 2\nds_read_b32 v9, v10 offset:24\ns_waitcnt lgkmcnt(0)\nv_readfirstlane_b32 s49, v9\ns_cmp_eq_u32 s49, 0\ns_cbranch_scc1 {name}_L")
    k(f"{name}_OK:")

def s2_wait(k, name, standalone):
    if not standalone:
        k(f"s_cmp_lg_u32 s24, 0\ns_cbranch_scc1 {name}_OK")
        k(f"v_and_b32 v8, 15, v1\nv_lshlrev_b32 v8, 8, v8\nv_add_u32 v8, {C_S2*256}, v8\ns_mov_b32 s48, 0")
        k(f"{name}:\nbuffer_load_dword v9, v8, s[36:39], 0 offen sc1\ns_add_u32 s48, s48, 1\ns_waitcnt vmcnt(0)")
        k(f"v_cmp_gt_u32 vcc, 10, v9\ns_cbranch_vccz {name}_OK\ns_sleep {S2SL}\ns_cmp_lt_u32 s48, {SPIN}\ns_cbranch_scc1 {name}")
        k(f"{name}_OK:")
    k("s_barrier")

def ffn_L(k, diag, standalone, A0=42, IW=8, IM=17, X='', H0=4, TA=(6, 4, 3)):
    vm = VM(k)
    tile_ids(k)
    srd_off(k, 36, WS_CNT, NCNT * 256)
    k("s_mul_i32 s50, s25, 5120")
    if "z" in X: k("s_mov_b32 s54, 0")
    al = a_loads(True)
    k("s_cmp_ge_u32 s21, 28\ns_cbranch_scc1 F_L_STAT")
    k(f"s_load_dwordx4 s[28:31], s[0:1], {ARG['Wg']}")
    k(f"s_mul_i32 s26, s22, 163840\ns_add_u32 s26, s26, {WS_HT}")
    srd_off(k, 8, "s26", 163840)
    k("v_lshrrev_b32 v10, 4, v1\nv_lshlrev_b32 v11, 5, v10\nv_xor_b32 v2, v6, v11\nv_xor_b32 v3, 128, v2")
    k("v_and_b32 v4, 255, v2\nv_xor_b32 v5, 128, v4\nv_mul_u32_u24 v10, 3456, v10")
    k("s_cmp_eq_u32 s23, 13\ns_cselect_b32 s26, 1, 2\ns_lshl_b32 s26, s26, 7\nv_mov_b32 v11, 0x7fff0000")
    k("v_cmp_gt_u32 vcc, s26, v4\nv_add_u32 v4, v4, v10\ns_nop 0\nv_cndmask_b32 v4, v11, v4, vcc")
    k(f"v_cmp_gt_u32 vcc, s26, v5\nv_add_u32 v5, v5, v10\nv_add_u32 v5, {4*3456-1024}, v5\nv_cndmask_b32 v5, v11, v5, vcc")
    k(f"s_lshl_b32 s32, s25, 11\ns_mov_b32 s34, s32\ns_mul_i32 s33, s25, {8*3456}\ns_lshl_b32 s26, s23, 8\ns_add_u32 s33, s33, s26")
    k("s_waitcnt lgkmcnt(0)")
    k.srd(12, 28, 0 if "w" in X else 640 * 3456); k.srd(16, 30, 0 if "w" in X else 640 * 3456)
    def dmaW(st):
        sl = SLB[st % R]
        vm(f"s_add_u32 m0, s34, {sl+8192}\ns_nop 0\nbuffer_load_dwordx4 v4, s[12:15], s33 offen lds\nbuffer_load_dwordx4 v5, s[12:15], s33 offen offset:1024 lds", ("st", st))
        vm(f"s_add_u32 m0, s34, {sl+16384}\ns_nop 0\nbuffer_load_dwordx4 v4, s[16:19], s33 offen lds\nbuffer_load_dwordx4 v5, s[16:19], s33 offen offset:1024 lds\ns_add_u32 s33, s33, {32*3456}", ("st", st))
    def dmaT(st):
        sl = SLB[st % R]
        vm(f"s_add_u32 m0, s34, {sl}\ns_nop 0\nbuffer_load_dwordx4 v2, s[8:11], s32 offen sc1 lds\nbuffer_load_dwordx4 v3, s[8:11], s32 offen offset:1024 sc1 lds\ns_add_u32 s32, s32, 8192", ("st", st))
    wd_wait(k, "F_L_PW")
    for _ in range(A0): vm(al.pop(0), "A")
    dmaW(0); dmaW(1)
    if diag: vm.stamp(7)
    s2_wait(k, "F_L_S2", standalone)
    if diag: vm.stamp(8)
    dmaT(0); dmaT(1); dmaT(2); dmaW(2)
    wpoll_prep(k, C_CS)
    for i in range(NST):
        vm.wait(("st", i) if i < NST - 1 else "m"); k("s_barrier")
        if i + R - 1 < NST: dmaT(i + R - 1); dmaW(i + R - 1)
        if i == 18: res_dma(k, vm)
        if i == IW - 3: poll_vec(k, vm, "F_L_PC", 0, 2, "v7", check=False, tag="pc")
        if i == IW:
            poll_vec(k, vm, "F_L_PC", 0, 2, "v7", issue=False, tag="pc")
            k(f"v_lshrrev_b32 v10, 5, v1\nv_mul_u32_u24 v10, {1792*4-512}, v10\nv_add_u32 v10, v10, v6\ns_lshl_b32 s26, s23, 9\ns_add_u32 s26, s26, {WS_CS-WS_RS}")
            vm(f"s_mov_b32 m0, {CSM}\ns_nop 0\nbuffer_load_dwordx4 v10, s[40:43], s26 offen sc1 lds", "cs")
            k(f"s_lshl_b32 s26, s22, 8\ns_add_u32 s26, s26, {C_M*256}\nv_mov_b32 v8, s26\nv_mov_b32 v7, 2")
        if i == IM - 3: poll_vec(k, vm, "F_L_PM", 0, 1, "v7", check=False, tag="pm")
        if i == IM:
            poll_vec(k, vm, "F_L_PM", 0, 1, "v7", issue=False, tag="pm")
            k(f"s_lshl_b32 s26, s22, 9\ns_add_u32 s26, s26, {WS_M-WS_RS}")
            vm(f"s_mov_b32 m0, {CSM+1024}\ns_nop 0\nbuffer_load_dwordx4 v6, s[40:43], s26 offen sc1 lds", "m")
        if i + R - 1 >= NST:
            for _ in range(TA[i - (NST - R + 1)]):
                if al: vm(al.pop(0), "A")
    nrest = len(al)
    k("s_lshl_b32 s47, s22, 8\ns_branch F_L_ARR")
    k("F_L_STAT:")
    vm2 = VM(k)
    wd_wait(k, "F_L_PW2")
    for x in a_loads(True)[:42-nrest]: vm2(x, "A")
    s2_wait(k, "F_L_S2B", standalone)
    k("s_barrier\ns_barrier")
    if "n" not in X:
        k(f"s_lshr_b32 s26, s20, 2\ns_lshl_b32 s26, s26, 2\ns_add_u32 s26, s26, s21\ns_sub_u32 s26, s26, 28\ns_mul_i32 s26, s26, {WD_DT}\ns_add_u32 s26, s26, {WS_WD}")
        srd_off(k, 8, "s26", WD_DT)
        k(f"s_lshl_b32 s26, s25, 13\ns_add_u32 s26, s26, {8*32768}\nv_lshlrev_b32 v10, 7, v1\ns_mov_b32 s27, 0")
        k("F_L_WARM:\nbuffer_load_dword v11, v10, s[8:11], s26 offen sc1\ns_sub_u32 s26, s26, 32768\ns_add_u32 s27, s27, 1\ns_cmp_lt_u32 s27, 9\ns_cbranch_scc1 F_L_WARM")
        k("s_waitcnt vmcnt(0)")
        if diag: stamp(k, 9)
    res_dma(k, vm2)
    k("s_sub_u32 s47, s2, 224\ns_lshr_b32 s47, s47, 1\ns_lshl_b32 s47, s47, 8")
    k("F_L_ARR:")
    k("s_barrier")
    k("s_cmp_lg_u32 s24, 0\ns_cbranch_scc1 F_L_NS")
    k(f"s_add_u32 s47, s47, {WS_CNT+C_S3*256}\ns_mov_b32 s49, 1\ns_atomic_add s49, s[4:5], s47")
    k("F_L_NS:")
    for x in al: k(x)
    k("s_cmp_lg_u32 s24, 0\ns_cbranch_scc1 F_L_GO")
    k(f"s_lshr_b32 s47, s44, 1\ns_lshl_b32 s47, s47, 8\ns_add_u32 s47, s47, {WS_CNT+C_S3*256}\ns_mov_b32 s48, 0")
    k("F_L_P3:\ns_mov_b32 s51, 0\ns_atomic_add s51, s[4:5], s47 glc\ns_waitcnt lgkmcnt(0)")
    k(f"s_add_u32 s48, s48, 1\ns_cmp_ge_u32 s51, 16\ns_cbranch_scc1 F_L_GO\ns_sleep 1\ns_cmp_lt_u32 s48, {SPIN}\ns_cbranch_scc1 F_L_P3")
    k("F_L_GO:")
    k("s_barrier")
    gemm2(k, diag, True, H0)

def gemm2(k, diag, isL, H0=4):
    vm = VM(k)
    NT = 3 if isL else 2
    I0 = 0 if isL else 3
    G = 16 if isL else 128
    areg = (lambda s, i: 64 + 12 * s + 4 * i) if isL else (lambda s, i: 16 + 8 * s + 4 * i)
    hbuf = (lambda r: 232 if r % 2 == 0 or r < 3 else 64) if isL else (lambda r: 160 + 16 * (r & 1))
    issued = [0]
    def dmaH(r):
        vm(f"s_add_u32 m0, s34, {HB0 + (r % NHS) * HSL}\ns_nop 0", None)
        for tp in range(4): vm(f"buffer_load_dwordx4 v{192+tp}, s[8:11], s32 offen offset:{tp*1024} sc1 lds", ("h", r))
        k("s_add_u32 s32, s32, 16384")
        issued[0] = r + 1
    def dmaH_parts(r):
        def part(tp):
            if tp == 0: vm(f"s_add_u32 m0, s34, {HB0 + (r % NHS) * HSL}\ns_nop 0\ns_nop 0", None)
            vm(f"buffer_load_dwordx4 v{192+tp}, s[8:11], s32 offen offset:{tp*1024} sc1 lds", ("h", r))
            if tp == 3: k("s_add_u32 s32, s32, 16384")
        issued[0] = r + 1
        return [(lambda tp=tp: part(tp)) for tp in range(4)]
    if not isL:
        for r in range(2): dmaH(r)
    if diag: vm.stamp(11)
    k("s_lshl_b32 s28, s44, 8\ns_lshl_b32 s30, s25, 6\ns_add_u32 s28, s28, s30\nv_and_b32 v11, 15, v1\nv_lshlrev_b32 v12, 2, v11")
    vm("buffer_load_dword v13, v12, s[40:43], s28 offen sc1", "rs")
    k(f"s_lshl_b32 s28, s25, 12\ns_add_u32 s28, s28, {HB0}\nv_add_u32 v2, s28, v6\nv_add_u32 v3, 0x10000, v2\nv_add_u32 v4, 0x20000, v2")
    for tp in range(1, 4):
        k(f"s_add_u32 s28, s25, {tp}\ns_and_b32 s28, s28, 3\ns_mul_i32 s28, s28, 15360\ns_add_u32 s28, s28, {RED+(tp-1)*5120}\nv_add_u32 v{6+tp}, s28, v6")
    k(f"s_mul_i32 s28, s25, 15360\ns_add_u32 s28, s28, {RED}\nv_add_u32 v14, s28, v6")
    k("v_lshrrev_b32 v5, 4, v1\nv_mul_u32_u24 v5, 20, v5\nv_lshrrev_b32 v10, 2, v1\nv_and_b32 v10, 3, v10\nv_add_u32 v5, v5, v10")
    k(f"v_lshlrev_b32 v5, 7, v5\nv_and_b32 v10, 3, v1\nv_lshl_add_u32 v5, v10, 3, v5\ns_lshl_b32 s28, s25, 5\ns_add_u32 s28, s28, {RES}\nv_add_u32 v5, s28, v5")
    k(f"s_load_dwordx2 s[6:7], s[0:1], {ARG['out']}")
    k("s_lshl_b32 s28, s44, 6\ns_lshl_b32 s30, s25, 4\ns_add_u32 s28, s28, s30\ns_mul_i32 s28, s28, 1280\ns_mul_i32 s30, s45, 160\ns_add_u32 s28, s28, s30")
    k("v_mul_u32_u24 v11, 1280, v11\nv_lshrrev_b32 v12, 4, v1\nv_mul_u32_u24 v12, 40, v12\nv_add_u32 v11, v11, v12")
    def hreads(r):
        sl = r % NHS
        return [f"ds_read_b128 {vr(hbuf(r)+4*tp,4)}, v{2+sl//4} offset:{(sl%4)*HSL+tp*1024}" for tp in range(4)]
    def mfmas(r, fill):
        order = [0, 1, 2, 3] if r < NRD - 1 else [3, 2, 1, 0]
        pend = []
        for tp in order:
            for i in range(NT):
                a = G + 4 * (NT * tp + i)
                k(f"v_mfma_f32_16x16x32_bf16 {vr(a,4)}, {vr(areg(r,i),4)}, {vr(hbuf(r)+4*tp,4)}, {vr(a,4) if r else 0}")
                if fill: fill.pop(0)()
                if r == NRD - 1 and tp: pend.append(f"ds_write_b128 v{6+tp}, {vr(a,4)} offset:{(I0+i)*1024}")
        while fill: fill.pop(0)()
        return pend
    if not isL:
        for r in range(2, H0): dmaH(r)
    if isL: k("s_waitcnt vmcnt(0) lgkmcnt(0)")
    else: vm.wait(("h", 0), " lgkmcnt(0)")
    k.srd(16, 6, 2621440)
    k("s_barrier")
    if diag: vm.stamp(12)
    for x in hreads(0): k(x)
    for r in range(NRD):
        pipelined = not (isL and r < 2)
        todo = [issued[0]] if (not isL and issued[0] < NRD) else []
        if r + 1 < NRD:
            if pipelined:
                if not isL: vm.wait(("h", r + 1), " lgkmcnt(0)")
                else: k("s_waitcnt lgkmcnt(0)")
                k("s_barrier")
                fill = [(lambda x=x: k(x)) for x in hreads(r + 1)]
                if todo:
                    d = dmaH_parts(todo[0])
                    fill = [fill[0], d[0], fill[1], d[1], fill[2], d[2], fill[3], d[3]]
                mfmas(r, fill)
            else:
                k("s_waitcnt lgkmcnt(0)\ns_barrier")
                mfmas(r, [])
                for x in hreads(r + 1): k(x)
        else:
            k("s_waitcnt lgkmcnt(0)")
            pend = mfmas(r, [])
    k("s_nop 4")
    for x in pend: k(x)
    if diag: vm.stamp(13)
    RB = 64 if isL else 16
    for i in range(NT): k(f"ds_read_b64_tr_b16 {vr(RB+2*i,2)}, v5 offset:{(I0+i)*512}")
    k("s_waitcnt lgkmcnt(0)\ns_barrier")
    PB = RB + 8
    for sl in range(3):
        for i in range(NT): k(f"ds_read_b128 {vr(PB+4*(NT*sl+i),4)}, v14 offset:{sl*5120+(I0+i)*1024}")
    UB = PB + 40
    for r in range(2 * NT): k(f"v_lshlrev_b32 v{UB+2*r}, 16, v{RB+r}\nv_and_b32 v{UB+1+2*r}, 0xffff0000, v{RB+r}")
    k("s_waitcnt vmcnt(0)\nv_mov_b32 v12, v13")
    for sl in range(3):
        k(f"s_waitcnt lgkmcnt({NT*(2-sl)})")
        for r in range(0, 4 * NT, 2): k(f"v_pk_add_f32 {vr(G+r,2)}, {vr(G+r,2)}, {vr(PB+4*NT*sl+r,2)}")
    for r in range(0, 4 * NT, 2):
        k(f"v_pk_fma_f32 {vr(G+r,2)}, {vr(G+r,2)}, v[12:13], {vr(UB+r,2)}\nv_cvt_pk_bf16_f32 v{RB+r//2}, v{G+r}, v{G+r+1}")
    if isL: k(f"buffer_store_dwordx4 {vr(RB,4)}, v11, s[16:19], s28 offen\nbuffer_store_dwordx2 {vr(RB+4,2)}, v11, s[16:19], s28 offen offset:16")
    else: k(f"buffer_store_dwordx4 {vr(RB,4)}, v11, s[16:19], s28 offen offset:24")
    if diag:
        k("s_waitcnt vmcnt(0)"); stamp(k, 14); stamp_flush(k)
    k("s_endpgm")

def ffn_C(k, diag, standalone, N1=16, X='', H0=4, P2=3):
    ACC = 112; W = [16, 64]; T = [48, 96]
    TA = [[2, 3, 4, 5], [240, 241, 242, 243]]; WA = [[8, 9, 10, 11], [244, 245, 246, 247]]
    tile_ids(k)
    k("s_mul_i32 s50, s25, 5120\ns_add_u32 s50, s50, 3072")
    k("s_cmp_ge_u32 s21, 28\ns_cbranch_scc1 F_C_STAT")
    k("s_and_b32 s28, s25, 1\ns_lshr_b32 s29, s25, 1")
    k("v_lshrrev_b32 v12, 2, v1\nv_and_b32 v13, 7, v12\nv_lshlrev_b32 v13, 5, v13\nv_lshl_add_u32 v13, v12, 8, v13\nv_and_b32 v12, 3, v1\nv_lshl_add_u32 v13, v12, 3, v13")
    k("s_lshl_b32 s30, s28, 7\nv_xor_b32 v2, s30, v13\ns_lshl_b32 s30, s29, 7\ns_add_u32 s30, s30, 8192\nv_xor_b32 v8, s30, v13")
    for b in range(1, 4): k(f"v_xor_b32 v{TA[0][b]}, {32*b}, v2\nv_xor_b32 v{WA[0][b]}, {32*b}, v8")
    for b in range(4): k(f"v_add_u32 v{TA[1][b]}, {SLB[2]}, v{TA[0][b]}\nv_add_u32 v{WA[1][b]}, {SLB[2]}, v{WA[0][b]}")
    for b in range(4): k(f"v_add_u32 v{TA[0][b]}, {SLB[0]}, v{TA[0][b]}\nv_add_u32 v{WA[0][b]}, {SLB[0]}, v{WA[0][b]}")
    for r in range(ACC, ACC + 128): k(f"v_mov_b32 v{r}, 0")
    srd_off(k, 16, WS_H, 32 * H_T64)
    k("s_cmp_eq_u32 s23, 13\ns_cselect_b32 s31, s29, 0\ns_cmp_eq_u32 s31, 1\ns_cselect_b32 s18, 0, s18")
    k(f"s_lshl_b32 s26, s22, 1\ns_add_u32 s26, s26, s28\ns_mul_i32 s26, s26, {H_T64}\ns_lshl_b32 s27, s23, 14\ns_add_u32 s26, s26, s27\ns_lshl_b32 s27, s29, 13\ns_add_u32 s26, s26, s27\ns_add_u32 s27, s26, 4096")
    k(f"v_lshrrev_b32 v14, 4, v1\nv_lshlrev_b32 v14, 4, v14\ns_lshl_b32 s30, s29, 8\ns_add_u32 s30, s30, {CSM}\nv_add_u32 v14, s30, v14")
    k(f"v_and_b32 v15, 15, v1\nv_lshlrev_b32 v15, 2, v15\ns_lshl_b32 s30, s28, 8\ns_add_u32 s30, s30, {CSM+1024}\nv_add_u32 v15, s30, v15")
    def reads(st):
        s = st & 1; sl = st % R; b = sl // 2; o = (sl & 1) * SLOT
        t = [f"ds_read_b64_tr_b16 {vr(T[s]+4*tau+2*half, 2)}, v{TA[b][tau]} offset:{o+4096*half}" for tau in range(4) for half in range(2)]
        w = []
        for v in range(8):
            grp, mat, hi = v >> 2, (v >> 1) & 1, v & 1
            for half in range(2): w.append(f"ds_read_b64_tr_b16 {vr(W[s]+4*v+2*half, 2)}, v{WA[b][2*grp+hi]} offset:{o+8192*mat+4096*half}")
        return w[:2] + t + w[2:]
    def stage(st, fill, tail=None):
        ms = st & 1; n = 0
        for v in range(8):
            for tau in range(4):
                a = ACC + 16 * v + 4 * tau
                k(f"v_mfma_f32_16x16x32_bf16 {vr(a,4)}, {vr(W[ms]+4*v,4)}, {vr(T[ms]+4*tau,4)}, {vr(a,4)}")
                for x in fill[n]: k(x)
                if n == 30 and tail: k(tail)
                n += 1
    def lin(l): return [[x] for x in l] + [[] for _ in range(32 - len(l))]
    def epi_tile(grp, tau):
        a = ACC + 64 * grp + 4 * tau
        l = []; sel = tau & 1
        for mat in range(2):
            for hi in range(2):
                for j in range(2):
                    x = a + 32 * mat + 16 * hi + 2 * j
                    l.append(f"v_pk_fma_f32 {vr(x,2)}, {vr(16+16*grp+8*mat+4*hi+2*j,2)}, {vr(48+2*tau,2)}, {vr(x,2)}")
        for hi in range(2):
            for j in range(2): l.append(f"v_pk_mul_f32 {vr(a+16*hi+2*j,2)}, {vr(a+16*hi+2*j,2)}, {vr(a+32+16*hi+2*j,2)}")
        for hi in range(2):
            for j in range(2): l.append(f"v_cvt_pk_bf16_f32 v{a+32+2*hi+j}, v{a+16*hi+2*j}, v{a+16*hi+2*j+1}")
        l.append(f"buffer_store_dwordx4 {vr(a+32,4)}, v6, s[16:19], s{26+grp} offen offset:{tau*1024} sc1")
        return l
    k("s_setprio 3")
    k("s_barrier")
    k("s_mov_b32 s36, 0\ns_barrier")
    if diag: stamp(k, 8)
    for x in reads(0): k(x)
    k("s_waitcnt lgkmcnt(0)\ns_barrier")
    k(".p2align 3\nF_C_LOOP:")
    stage(0, lin(reads(1)), "s_waitcnt lgkmcnt(0)\ns_add_u32 s36, s36, 1"); k("s_barrier\ns_nop 0")
    stage(1, lin(reads(2)), "s_waitcnt lgkmcnt(0)\ns_cmp_lt_u32 s36, 5"); k("s_barrier\ns_nop 0")
    stage(2, lin(reads(3)), "s_waitcnt lgkmcnt(0)\ns_nop 0"); k("s_cbranch_scc0 F_C_TAIL\ns_barrier")
    stage(3, lin(reads(0)), "s_waitcnt lgkmcnt(0)\ns_nop 0"); k("s_barrier\ns_branch F_C_LOOP")
    k("F_C_TAIL:")
    fill = [[] for _ in range(32)]
    for i in range(8):
        grp_, mat_, hi_ = i >> 2, (i >> 1) & 1, i & 1
        fill[i].append(f"ds_read_b128 {vr(16+4*i,4)}, v14 offset:{128*grp_+512*mat_+64*hi_}")
    for tau in range(4): fill[8 + tau].append(f"ds_read2_b32 {vr(48+2*tau,2)}, v15 offset0:{16*tau} offset1:{16*tau}")
    fill[20].append("s_waitcnt lgkmcnt(0)\ns_nop 0")
    e = [x for tau in range(4) for x in epi_tile(0, tau)]
    for i in range(21, 32):
        for _ in range(0 if "e" in X else 2): fill[i].append(e.pop(0))
    stage(3, fill)
    if diag: stamp(k, 9)
    for x in e: k(x)
    for tau in range(4):
        for x in epi_tile(1, tau): k(x)
    k("s_branch F_C_ARR")
    k("F_C_STAT:")
    srd_off(k, 16, WS_HT, 2621440)
    k("s_sub_u32 s22, s2, 224\ns_lshr_b32 s26, s22, 1\ns_mul_i32 s26, s26, 163840\ns_and_b32 s27, s22, 1\ns_lshl_b32 s27, s27, 7\ns_add_u32 s26, s26, s27")
    k(f"s_mul_i32 s27, s25, {160*256}\ns_add_u32 s26, s26, s27")
    k("v_lshrrev_b32 v10, 3, v1\nv_lshlrev_b32 v10, 8, v10\nv_and_b32 v11, 7, v1\nv_lshl_add_u32 v10, v11, 4, v10")
    for r in range(16, 32): k(f"v_mov_b32 v{r}, 0")
    k("s_barrier")
    for i in range(20):
        k(f"buffer_load_dwordx4 {vr(112+4*i,4)}, v10, s[16:19], s26 offen offset:{(i&1)*2048} sc1" + ("\ns_add_u32 s26, s26, 4096" if i & 1 else ""))
    for i in range(20):
        k(f"s_waitcnt vmcnt({19-i})")
        for j in range(4):
            w = 112 + 4 * i + j
            k(f"v_lshlrev_b32 v32, 16, v{w}\nv_and_b32 v33, 0xffff0000, v{w}")
            k(f"v_pk_add_f32 {vr(16+2*j,2)}, {vr(16+2*j,2)}, v[32:33]\nv_pk_fma_f32 {vr(24+2*j,2)}, v[32:33], v[32:33], {vr(24+2*j,2)}")
    k("s_lshl_b32 s26, s25, 12\ns_add_u32 s26, s26, 16384\nv_lshlrev_b32 v10, 6, v1\nv_add_u32 v10, s26, v10")
    for j in range(4): k(f"ds_write_b128 v10, {vr(16+4*j,4)} offset:{16*j}")
    k("s_waitcnt lgkmcnt(0)\ns_barrier")
    k("s_cmp_lg_u32 s25, 0\ns_cbranch_scc1 F_C_PUB")
    k("v_lshrrev_b32 v10, 3, v1\nv_lshlrev_b32 v10, 6, v10\nv_and_b32 v11, 7, v1\nv_lshl_add_u32 v10, v11, 2, v10\nv_add_u32 v10, 16384, v10")
    k("v_mov_b32 v16, 0\nv_mov_b32 v17, 0")
    for g in range(4):
        for s in range(8): k(f"ds_read2_b32 {vr(32+2*s,2)}, v10 offset0:0 offset1:8\nv_add_u32 v10, 512, v10")
        k("s_waitcnt lgkmcnt(0)")
        for s in range(8): k(f"v_pk_add_f32 v[16:17], v[16:17], {vr(32+2*s,2)}")
    k(f"v_mul_f32 v16, {hexf(1.0/640)}, v16\nv_mul_f32 v17, {hexf(1.0/640)}, v17\nv_fma_f32 v17, -v16, v16, v17")
    k(f"v_max_f32 v17, 0, v17\nv_add_f32 v17, {hexf(1e-5)}, v17\nv_rcp_f32 v12, v17\nv_sub_f32 v13, 0, v16")
    k(f"s_lshl_b32 s26, s22, 8\nv_lshlrev_b32 v10, 2, v1\ns_add_u32 s27, s26, {WS_M-WS_RS}")
    k("buffer_store_dword v13, v10, s[40:43], s27 offen sc1\nbuffer_store_dword v12, v10, s[40:43], s26 offen sc1")
    k(f"s_lshr_b32 s47, s22, 1\ns_lshl_b32 s47, s47, 8\ns_add_u32 s47, s47, {WS_CNT+C_M*256}\ns_mov_b32 s49, 1\ns_waitcnt vmcnt(0)\ns_atomic_add s49, s[4:5], s47")
    if diag: stamp(k, 9)
    k("F_C_PUB:\ns_barrier")
    k("F_C_ARR:")
    al = a_loads(False)
    for x in al[:N1]: k(x)
    k(f"s_waitcnt vmcnt({N1})")
    if diag: stamp(k, 10)
    k("s_barrier")
    for x in al[N1:]: k(x)
    k(f"s_mul_i32 s26, s44, {H_T64}\ns_add_u32 s26, s26, {WS_H-3072}")
    srd_off(k, 8, "s26", H_T64 + 3072)
    for tp in range(4):
        k(f"s_add_u32 s28, s25, {tp}\ns_and_b32 s28, s28, 3\ns_lshl_b32 s28, s28, 10\ns_add_u32 s28, s28, {3072-tp*1024}\nv_add_u32 v{192+tp}, s28, v6")
    k(f"s_lshl_b32 s32, s25, 12\ns_mov_b32 s34, s32\ns_setprio {P2}")
    k("s_barrier")
    gemm2(k, diag, False, H0)

def gen_ffn8(diag=False, **kw):
    k = Kern("ffn8_kernel", 256, 512, M8_LDS, vgpr=256, sgpr=100)
    k("s_cmp_ge_u32 s2, 256\ns_cbranch_scc1 F_END")
    k(f"s_load_dwordx2 s[4:5], s[0:1], {ARG['ws']}")
    k.code_prefetch("F_END", vdst=255)
    k("v_readfirstlane_b32 s24, v0\nv_and_b32 v1, 63, v0\ns_lshr_b32 s24, s24, 6\ns_and_b32 s25, s24, 3\ns_and_b32 s20, s2, 7\ns_lshr_b32 s21, s2, 3\ns_waitcnt lgkmcnt(0)")
    if diag:
        stamp_setup(k); stamp(k, 0)
    k("s_cmp_ge_u32 s24, 4\ns_cbranch_scc1 F_C")
    ffn_L(k, diag, True, **{a: b for a, b in kw.items() if a in ("A0", "IW", "IM", "X", "H0", "TA")})
    k("F_C:")
    ffn_C(k, diag, True, **{a: b for a, b in kw.items() if a in ("N1", "X", "H0", "P2")})
    k("F_END:\ns_endpgm")
    return k
```

```python
from m8_common import *
KC_P = 4160; KC_CH = 4 * KC_P
UA = 4 * KC_CH; U_P = 4608
ZA = UA + 4 * U_P
FLG = ZA + 32768
SB = FLG + 1024 - (FLG % 1024)
JOBRED = 72 * 1024
RP = 272
assert SB + 4 * 8704 <= 161792, SB

def kgen_pass(k, hi_half, sprinkle=None, waddr=None):
    sp = list(sprinkle or [])
    def S():
        if sp: sp.pop(0)()
    ACC = 44
    WR = "ds_write_addtid_b32" if waddr is None else f"ds_write_b32 {waddr},"
    for i in range(6):
        k(f"v_and_b32 v{10+i}, 0xffff0000, v{200+i}" if hi_half else f"v_lshlrev_b32 v{10+i}, 16, v{200+i}")
    E1, E2, E4, E8, E256, Wc, Bc, Z, T, O = 20, 22, 24, 26, 28, 30, 32, 34, 36, 38
    k(f"v_mul_f32 v10, v6, v10\nv_mul_f32 v11, v6, v11\nv_mul_f32 v10, {hexf(math.log2(math.e))}, v10\nv_mul_f32 v11, {hexf(1/(2*math.pi))}, v11")
    k(f"v_mul_f32 v16, 0x43800000, v10\nv_mul_f32 v17, 0x43800000, v11\nv_fract_f32 v11, v11\nv_fract_f32 v17, v17")
    k(f"v_exp_f32 v10, v10\nv_cos_f32 v{E1}, v11\nv_sin_f32 v{E1+1}, v11\nv_exp_f32 v16, v16\nv_cos_f32 v{E256}, v17\nv_sin_f32 v{E256+1}, v17")
    k(f"v_mul_f32 v{E1}, v10, v{E1}\nv_mul_f32 v{E1+1}, v10, v{E1+1}\nv_mul_f32 v{E256}, v16, v{E256}\nv_mul_f32 v{E256+1}, v16, v{E256+1}")
    k(".p2align 3")
    cmul(k, E2, E1, E1, T); cmul(k, E4, E2, E2, T); cmul(k, E8, E4, E4, T)
    k(f"v_mov_b32 v{O}, 0x3f80\n{WR} v{O}")
    k(f"v_cvt_pk_bf16_f32 v{O+1}, v{E8}, -v{E8+1}\n{WR} v{O+1} offset:{RP}")
    src = E8
    for j in range(2, 32):
        cmul(k, Z, src, E8, T); src = Z
        o = O + (j & 1)
        k(f"v_cvt_pk_bf16_f32 v{o}, v{Z}, -v{Z+1}\n{WR} v{o} offset:{j*RP}")
        if j % 4 == 2: S()
    QF = 64; PF = 96
    for s in range(8): k(f"ds_read_b128 {vr(QF+4*s,4)}, v5 offset:{32*s}")
    cmul(k, Wc, 14, 12, T)
    k(f"v_mul_f32 v{Wc}, v6, v{Wc}\nv_mul_f32 v{Wc+1}, v6, v{Wc+1}")
    cnt = [0]
    def put(z, rows):
        o = O + (cnt[0] & 1); cnt[0] += 1
        k(f"v_cvt_pk_bf16_f32 v{o}, v{z}, v{z+1}")
        for r in rows: k(f"{WR} v{o} offset:{r*RP}")
        if cnt[0] % 5 == 0: S()
    put(Wc, [0]); src = Wc
    for j in range(1, 8):
        cmul(k, Z, src, E1, T); src = Z; put(Z, [j])
    cmul(k, Bc, Wc, E256, T); put(Bc, [8]); src = Bc
    for rows in ([9], [10, 12], [13], [14]):
        cmul(k, Z, src, E2, T); src = Z; put(Z, rows)
    for r0, r1, r2 in (([16], [17, 20], [21]), ([18], [19, 22], [23])):
        cmul(k, Bc, Bc, E256, T); put(Bc, r0)
        cmul(k, Z, Bc, E4, T); put(Z, r1)
        cmul(k, Z, Z, E4, T); put(Z, r2)
    for r in (24, 25, 28, 29, 30):
        cmul(k, Bc, Bc, E256, T); put(Bc, [r])
    for s in range(8): k(f"ds_read_b128 {vr(PF+4*s,4)}, v5 offset:{32*s}")
    while sp: S()
    for s in range(8):
        k(f"s_waitcnt lgkmcnt({7-s})")
        k(f"v_mfma_f32_32x32x16_bf16 {vr(ACC,16)}, {vr(PF+4*s,4)}, {vr(QF+4*s,4)}, {vr(ACC,16) if s else 0}")

def param_loads(k, vm):
    k("s_lshl_b32 s22, s26, 8\nv_lshl_add_u32 v2, v1, 2, s22\ns_lshr_b32 s23, s26, 1\ns_lshl_b32 s23, s23, 2")
    ptr = [52, 54, 56, 58, 72, 74]
    for i in range(6): vm(f"global_load_dword v{200+i}, v2, s[{ptr[i]}:{ptr[i]+1}]", "par")
    k("s_load_dword s28, s[76:77], s23")
def dt_calc(k):
    k("s_and_b32 s23, s26, 1\ns_lshl_b32 s23, s23, 4\ns_lshr_b32 s28, s28, s23\ns_lshl_b32 s28, s28, 16")
    k(f"v_mov_b32 v6, s28\nv_mul_f32 v6, {hexf(math.log2(math.e))}, v6\nv_exp_f32 v6, v6\ns_nop 0\nv_cvt_pk_bf16_f32 v6, v6, v6\nv_and_b32 v6, 0xffff0000, v6")
def frag_addr(k, base):
    k(f"v_and_b32 v3, 31, v1\nv_lshrrev_b32 v4, 5, v1\nv_mul_u32_u24 v5, {RP}, v3\nv_lshl_add_u32 v5, v4, 4, v5\nv_add_u32 v5, {base}, v5")
PTRS = f"s_load_dwordx8 s[52:59], s[0:1], {ARG['A_re']}\ns_load_dwordx4 s[72:75], s[0:1], {ARG['C_re']}\ns_load_dwordx4 s[76:79], s[0:1], {ARG['log_dt']}"

def zcheck(k, name):
    k(f"s_mov_b32 s48, 0\n{name}:\nbuffer_load_dword v9, off, s[36:39], 0 offset:8 sc1\ns_add_u32 s48, s48, 1\ns_waitcnt vmcnt(0)\nv_readfirstlane_b32 s49, v9")
    k(f"s_cmp_lg_u32 s49, 0\ns_cbranch_scc1 {name}_OK\ns_sleep 2\ns_cmp_lt_u32 s48, {SPIN}\ns_cbranch_scc1 {name}\n{name}_OK:")

def conv_L(k, diag):
    vm = VM(k)
    k(f"s_load_dwordx2 s[6:7], s[0:1], {ARG['x']}\ns_load_dwordx2 s[34:35], s[0:1], {ARG['dbg']}")
    k(PTRS)
    k("s_mul_i32 s33, s20, 20\ns_add_u32 s33, s33, s21\ns_lshl_b32 s26, s33, 2\ns_add_u32 s26, s26, s25")
    k("v_mul_u32_u24 v62, 2560, v0\nv_lshlrev_b32 v63, 4, v0\ns_lshl_b32 s27, s33, 3")
    k(f"v_mov_b32 v12, 0\nv_mov_b32 v13, 0\ns_lshl_b32 s29, s25, 2\ns_add_u32 s29, s29, {FLG}\nv_mov_b32 v60, s29\nv_mov_b32 v19, {FLG}\nds_write_b32 v60, v12\nds_write_b64 v19, v[12:13] offset:16\nds_write_b32 v19, v12 offset:24")
    k("s_waitcnt lgkmcnt(0)")
    param_loads(k, vm)
    k("s_load_dwordx2 s[30:31], s[78:79], s27")
    k.srd(8, 6, 2621440)
    k("s_barrier")
    XS = 128; GR = 144
    for i in range(8):
        vm(f"buffer_load_dwordx2 {vr(XS+2*i,2)}, v62, s[8:11], s27 offen offset:{(i&1)*1280}" + (f"\ns_add_u32 s27, s27, {512*1280}" if i & 1 else ""), "xs")
    if diag:
        stamp_setup(k); vm.stamp(0)
    k.srd(36, 34, 256)
    srd_off(k, 12, WS_ST, 16384)
    k(f"s_mul_i32 s29, s25, 8704\ns_add_u32 s29, s29, {SB}\nv_lshl_add_u32 v18, v1, 2, s29")
    frag_addr(k, "s29")
    k("s_waitcnt lgkmcnt(0)")
    dt_calc(k)
    vm.wait("par")
    if diag: vm.stamp(1)
    def gload(i): return f"s_mov_b32 s27, {4096*i}\nbuffer_load_dwordx4 {vr(GR+4*i,4)}, v63, s[12:15], s27 offen sc1"
    kgen_pass(k, True, None, "v18")
    k("v_lshlrev_b32 v7, 4, v1\nv_add_u32 v7, s29, v7\nv_mov_b32 v8, 1\ns_mov_b32 s47, 0x0c0c0400\ns_mov_b32 s49, 0x04000c0c\ns_nop 7\ns_nop 1")
    for i in range(4): k(f"ds_write_b128 v7, {vr(44+4*i,4)} offset:{1024*i}")
    k("ds_write_b32 v60, v8")
    if diag: vm.stamp(3)
    vm("buffer_load_dword v61, off, s[36:39], 0 sc1", "g")
    for i in range(4): vm(gload(i), "g")
    XF = 160; UF = 64; UP = 96
    vm.wait("xs")
    if diag: vm.stamp(2)
    for t in range(8):
        for h in range(2): k(f"v_lshlrev_b32 v{XF+4*t+2*h}, 16, v{XS+2*t+h}\nv_and_b32 v{XF+4*t+2*h+1}, 0xffff0000, v{XS+2*t+h}")
    k(f"v_lshlrev_b32 v7, 2, v0\nv_add_u32 v7, {UA+480}, v7")
    k("s_mov_b32 s48, 0\ns_waitcnt vmcnt(0)")
    k("S_GP:")
    for i in range(4):
        g = GR + 4 * i
        k(f"v_perm_b32 v10, v{g+1}, v{g}, s47\nv_perm_b32 v11, v{g+3}, v{g+2}, s49\nv_or_b32 v10, v10, v11")
        k(f"v_xor_b32 v{12 if i == 0 else 13}, v10, v61")
        if i: k("v_or_b32 v12, v12, v13")
    k("v_not_b32 v13, v61\nv_and_or_b32 v12, v13, 1, v12")
    k("v_cmp_ne_u32 vcc, 0, v12\ns_add_u32 s48, s48, 1\ns_cbranch_vccz S_GOK")
    k("buffer_load_dword v61, off, s[36:39], 0 sc1")
    for i in range(4): k(gload(i))
    k(f"s_cmp_lt_u32 s48, {SPIN}\ns_waitcnt vmcnt(0)\ns_cbranch_scc1 S_GP")
    k("S_GOK:")
    if diag: stamp(k, 4)
    for p in range(4):
        for t in (2 * p, 2 * p + 1):
            k(f"v_and_b32 v{GR+2*t}, 0xffffff00, v{GR+2*t}\nv_and_b32 v{GR+2*t+1}, 0xffffff00, v{GR+2*t+1}")
            for h in range(2):
                k(f"v_pk_fma_f32 {vr(UF+4*t+2*h,2)}, {vr(XF+4*t+2*h,2)}, {vr(GR+2*t,2)}, {vr(GR+2*t,2)} op_sel:[0,0,1] op_sel_hi:[1,0,1]")
        for c in range(4):
            k(f"v_cvt_pk_bf16_f32 v{UP+4*c+p}, v{UF+8*p+c}, v{UF+8*p+4+c}\nds_write_b32 v7, v{UP+4*c+p} offset:{c*U_P+1024*p}")
    k("s_waitcnt lgkmcnt(0)")
    if diag: stamp(k, 5)
    k("s_barrier")
    k(f"v_lshlrev_b32 v7, 3, v0\nv_add_u32 v7, {ZA}, v7")
    k("s_lshl_b32 s60, s30, 16\ns_and_b32 s61, s30, 0xffff0000\ns_lshl_b32 s62, s31, 16\ns_and_b32 s63, s31, 0xffff0000")
    for c in range(4):
        for p in range(4):
            k(f"v_lshlrev_b32 v16, 16, v{UP+4*c+p}\nv_and_b32 v17, 0xffff0000, v{UP+4*c+p}")
            k(f"v_fma_f32 v{24+2*p}, v16, s{60+c}, v{XF+8*p+c}\nv_fma_f32 v{25+2*p}, v17, s{60+c}, v{XF+8*p+4+c}")
            k(f"ds_write_b64 v7, {vr(24+2*p,2)} offset:{c*8192+2048*p}")
    zcheck(k, "S_ZC")
    k("s_mov_b64 exec, 1\nds_add_u32 v19, v8 offset:16\ns_mov_b64 exec, -1\ns_branch M_FFN_L")

def job_wg(k, diag, THR=10):
    vm = VM(k)
    k(f"s_load_dwordx2 s[6:7], s[0:1], {ARG['x']}\ns_load_dwordx2 s[34:35], s[0:1], {ARG['dbg']}\ns_load_dwordx2 s[56:57], s[0:1], {ARG['Wd']}")
    k("s_sub_u32 s33, s2, 160\ns_mul_i32 s26, s24, 96\ns_add_u32 s26, s26, s33\ns_mul_i32 s27, s26, 2560")
    k(f"s_add_u32 s28, s27, {768*2560}")
    k("v_lshrrev_b32 v7, 5, v1\nv_and_b32 v3, 31, v1\nv_lshlrev_b32 v4, 4, v3\nv_mul_u32_u24 v5, 1280, v7\nv_add_u32 v5, v5, v4")
    k("v_cmp_gt_u32 vcc, 16, v3\nv_add_u32 v8, 1024, v5\nv_mov_b32 v9, 0x7fffffff\ns_sub_u32 s22, s2, 202\nv_cndmask_b32 v8, v9, v8, vcc")
    k("s_cmp_ge_i32 s22, 27\ns_cselect_b32 s29, 1, 0\ns_lshl_b32 s23, s29, 3")
    k(f"s_add_u32 s23, s23, {ARG['Wg']}\ns_load_dwordx2 s[58:59], s[0:1], s23")
    k("s_waitcnt lgkmcnt(0)")
    k.srd(8, 6, 2621440)
    for b, so in ((16, "s27"), (28, "s28")):
        vm(f"buffer_load_dwordx4 {vr(b,4)}, v5, s[8:11], {so} offen\nbuffer_load_dwordx4 {vr(b+4,4)}, v5, s[8:11], {so} offen offset:512\nbuffer_load_dwordx4 {vr(b+8,4)}, v8, s[8:11], {so} offen", "x")
    k.srd(40, 56, 1728 * 1280)
    k("s_cmp_lt_u32 s2, 202\ns_cselect_b32 s42, 0, s42\ns_cselect_b32 s30, 0, s22\ns_mul_i32 s31, s30, 40960\ns_mul_i32 s27, s24, 160\ns_add_u32 s31, s31, s27\ns_mul_i32 s27, s24, 5120\ns_mov_b32 s30, 6554")
    for j in range(5):
        k(f"v_add_u32 v2, {64*j}, v1\nv_mul_lo_u32 v3, v2, s30\nv_lshrrev_b32 v3, 16, v3\nv_mul_u32_u24 v4, 10, v3\nv_sub_u32 v4, v2, v4\nv_mul_u32_u24 v3, 1280, v3\nv_lshl_add_u32 v3, v4, 4, v3")
        vm(f"s_add_u32 m0, s27, {1024*j}\ns_nop 0\nbuffer_load_dwordx4 v3, s[40:43], s31 offen lds", "wd")
    k(f"v_mov_b32 v62, {FLG}\nv_mov_b32 v3, 0\nds_write_b32 v62, v3 offset:24\ns_waitcnt lgkmcnt(0)\ns_barrier")
    k.srd(36, 34, 256)
    srd_off(k, 16, WS_CNT, NCNT * 256)
    k("s_cmp_eq_u32 s26, 672\ns_cselect_b32 s18, s18, 0\nv_lshlrev_b32 v2, 8, v1\nv_mov_b32 v3, 0")
    vm("buffer_store_dword v3, v2, s[16:19], 0 offen sc0 sc1", "z")
    if diag:
        stamp_setup(k); vm.stamp(0)
    srd_off(k, 12, WS_ST, 16384)
    k("v_mov_b32 v14, 0x3f803f80\ns_mov_b32 s46, 0")
    vm.wait("x")
    if diag: vm.stamp(1)
    k("buffer_load_dword v61, off, s[36:39], 0 sc1")
    k("J_ST:")
    k("v_mov_b32 v12, 0\nv_mov_b32 v13, 0")
    for r in range(16, 28):
        k(f"v_dot2c_f32_bf16 v12, v{r}, v14\nv_dot2c_f32_bf16 v13, v{r}, v{r}")
    k("s_nop 2")
    for sh in (1, 2, 4, 8):
        k(f"v_add_f32_dpp v12, v12, v12 row_ror:{sh} row_mask:0xf bank_mask:0xf\nv_add_f32_dpp v13, v13, v13 row_ror:{sh} row_mask:0xf bank_mask:0xf\ns_nop 0")
    k("v_mov_b32 v40, v12\nv_mov_b32 v41, v13\ns_nop 1\nv_permlane16_swap_b32 v40, v12\nv_permlane16_swap_b32 v41, v13\ns_nop 1")
    k("v_add_f32 v12, v12, v40\nv_add_f32 v13, v13, v41")
    k(f"v_mul_f32 v12, {hexf(1.0/640)}, v12\nv_mul_f32 v13, {hexf(1.0/640)}, v13\nv_fma_f32 v13, -v12, v12, v13")
    k(f"v_max_f32 v13, 0, v13\nv_add_f32 v13, {hexf(1e-5)}, v13\nv_rsq_f32 v40, v13\ns_nop 0")
    k("v_mul_f32 v41, -v12, v40\nv_mov_b32 v42, v40\nv_mov_b32 v43, v41\ns_nop 1")
    k("v_permlane32_swap_b32 v40, v42\nv_permlane32_swap_b32 v41, v43")
    k("s_cmp_lg_u32 s46, 0\ns_cbranch_scc1 J_NOK\ns_mov_b32 s48, 0\ns_waitcnt vmcnt(0)")
    k("J_NP:\nv_readfirstlane_b32 s46, v61\ns_add_u32 s48, s48, 1\ns_cmp_lg_u32 s46, 0\ns_cbranch_scc1 J_NOK")
    k(f"buffer_load_dword v61, off, s[36:39], 0 sc1\ns_cmp_lt_u32 s48, {SPIN}\ns_waitcnt vmcnt(0)\ns_cbranch_scc1 J_NP\nJ_NOK:")
    for i in range(4):
        k(f"s_mov_b32 s47, {0x07060500 + i}\nv_perm_b32 v{44+i}, v{40+i}, v61, s47")
    k("s_lshl_b32 s27, s26, 4\ns_mov_b64 exec, 1\nbuffer_store_dwordx4 v[44:47], off, s[12:15], s27 sc1\ns_mov_b64 exec, -1")
    k("s_cmp_ge_u32 s26, 256\ns_cbranch_scc1 J_ST2\ns_add_u32 s26, s26, 768")
    for r in range(12): k(f"v_mov_b32 v{16+r}, v{28+r}")
    k("s_branch J_ST\nJ_ST2:")
    if diag: stamp(k, 2)
    k("s_cmp_lg_u32 s26, 672\ns_cbranch_scc1 J_NZ\nv_mov_b32 v4, 1\ns_mov_b64 exec, 1\nbuffer_store_dword v4, off, s[36:39], 0 offset:8 sc0 sc1\ns_mov_b64 exec, -1\nJ_NZ:")
    k("s_cmp_lt_u32 s2, 202\ns_cbranch_scc1 J_DONE")
    vm = VM(k)
    k("s_mul_i32 s27, s24, 5120")
    srd_off(k, 12, WS_WD, 8 * WD_DT)
    k("v_lshrrev_b32 v2, 2, v1\nv_mul_u32_u24 v2, 160, v2\nv_and_b32 v3, 3, v1\nv_mul_u32_u24 v3, 40, v3\nv_add3_u32 v4, v2, v3, s27")
    k(f"s_mul_i32 s31, s24, {WD_DT}\ns_mul_i32 s30, s22, 5120\ns_add_u32 s31, s31, s30\nv_lshlrev_b32 v6, 4, v1\nv_add_u32 v7, 4096, v6")
    k("s_mul_i32 s23, s29, 27\ns_sub_u32 s23, s22, s23")
    k.srd(16, 58, 640 * 3456)
    k("v_lshrrev_b32 v2, 3, v1\nv_mul_u32_u24 v5, 3456, v2\nv_and_b32 v3, 7, v1\nv_lshl_add_u32 v5, v3, 4, v5")
    k(f"s_lshl_b32 s26, s23, 7\ns_mul_i32 s27, s24, {8*3456}\ns_add_u32 s26, s26, s27")
    for r in range(16, 24): k(f"v_mov_b32 v{r}, 0")
    vm("buffer_load_dword v9, off, s[36:39], 0 offset:8 sc1", "zf")
    for i in range(5):
        k(f"ds_read_b64_tr_b16 {vr(48+4*i,2)}, v4 offset:{8*i}\nds_read_b64_tr_b16 {vr(50+4*i,2)}, v4 offset:{8*i+2560}")
    for i in range(5):
        k(f"s_waitcnt lgkmcnt({2*(4-i)})")
        vm(f"buffer_store_dwordx4 {vr(48+4*i,4)}, " + (f"v6, s[12:15], s31 offen offset:{i*1024} sc1" if i < 4 else "v7, s[12:15], s31 offen sc1"), "ws")
    nd = [0]
    def ld():
        vm(f"buffer_load_dwordx4 {vr(72+4*nd[0],4)}, v5, s[16:19], s26 offen\ns_add_u32 s26, s26, {64*3456}", nd[0]); nd[0] += 1
    for _ in range(min(THR, 10)): ld()
    vm.wait("ws")
    k("v_readfirstlane_b32 s49, v9\ns_cmp_lg_u32 s49, 0\ns_cbranch_scc1 J_ZOK")
    zcheck(k, "J_ZC")
    k("J_ZOK:\ns_barrier")
    k("s_cmp_lg_u32 s24, 0\ns_cbranch_scc1 J_NA")
    k(f"s_and_b32 s47, s22, 1\ns_lshl_b32 s47, s47, 8\ns_add_u32 s47, s47, {WS_CNT+C_WD*256}\ns_mov_b32 s49, 1\ns_atomic_add s49, s[4:5], s47\nJ_NA:")
    if diag: vm.stamp(3)
    for i in range(10):
        vm.wait(i)
        if nd[0] < 10: ld()
        for j in range(4):
            w = 72 + 4 * i + j
            k(f"v_lshlrev_b32 v24, 16, v{w}\nv_and_b32 v25, 0xffff0000, v{w}\nv_pk_add_f32 {vr(16+2*j,2)}, {vr(16+2*j,2)}, v[24:25]")
    k(f"s_lshl_b32 s27, s24, 11\ns_add_u32 s27, s27, {JOBRED}\nv_lshlrev_b32 v10, 5, v1\nv_add_u32 v10, s27, v10\nds_write_b128 v10, v[16:19]\nds_write_b128 v10, v[20:23] offset:16")
    k("s_waitcnt lgkmcnt(0)\ns_barrier")
    k("s_cmp_lg_u32 s24, 7\ns_cbranch_scc1 J_OUT")
    srd_off(k, 12, WS_CS, 2 * 1792 * 4)
    k(f"v_lshlrev_b32 v10, 2, v1\nv_add_u32 v11, {JOBRED}, v10\nv_mov_b32 v16, 0\nv_mov_b32 v17, 0")
    for g in range(4):
        for s_ in range(8): k(f"ds_read2st64_b32 {vr(32+2*s_,2)}, v11 offset0:{16*g+2*s_} offset1:{16*g+2*s_+1}")
        k("s_waitcnt lgkmcnt(0)")
        for s_ in range(8): k(f"v_pk_add_f32 v[16:17], v[16:17], {vr(32+2*s_,2)}")
    k(f"v_add_f32 v16, v16, v17\ns_mul_i32 s30, s29, {1792*4}\ns_lshl_b32 s27, s23, 8\ns_add_u32 s30, s30, s27\nbuffer_store_dword v16, v10, s[12:15], s30 offen sc1")
    k(f"s_and_b32 s47, s22, 1\ns_lshl_b32 s47, s47, 8\ns_add_u32 s47, s47, {WS_CNT+C_CS*256}\ns_mov_b32 s49, 1\ns_waitcnt vmcnt(0)\ns_atomic_add s49, s[4:5], s47")
    if diag: stamp(k, 4)
    k("s_branch J_OUT")
    k("J_DONE:")
    zcheck(k, "J_ZD")
    k("J_OUT:\ns_cmp_ge_u32 s24, 4\ns_cbranch_scc1 M_FFN_C\ns_branch M_FFN_L")

def conv_C(k, diag):
    vm = VM(k)
    k(PTRS)
    k("s_cmp_lg_u32 s2, 0\ns_cbranch_scc1 S_C_NN\ns_cmp_lg_u32 s24, 4\ns_cbranch_scc1 S_C_NN")
    k(f"s_load_dwordx2 s[34:35], s[0:1], {ARG['dbg']}\ns_memrealtime s[46:47]\ns_waitcnt lgkmcnt(0)\ns_or_b32 s48, s46, 1\nv_mov_b32 v8, s48\nv_mov_b32 v9, 0")
    k("s_mov_b64 exec, 1\nglobal_store_dword v9, v8, s[34:35] sc0 sc1\ns_mov_b64 exec, -1")
    k("S_C_NN:")
    k("s_mul_i32 s33, s20, 20\ns_add_u32 s33, s33, s21\ns_lshl_b32 s26, s33, 2\ns_add_u32 s26, s26, s25")
    k("s_waitcnt lgkmcnt(0)")
    param_loads(k, vm)
    k("s_barrier")
    if diag:
        stamp_setup(k); vm.stamp(0)
    k(f"s_mul_i32 s30, s25, {KC_CH}\ns_mov_b32 m0, s30")
    frag_addr(k, "s30")
    k(f"s_mul_i32 s31, s25, {U_P}\ns_add_u32 s31, s31, {UA}\nv_lshlrev_b32 v7, 4, v1\nv_min_u32 v8, 464, v7\nv_add_u32 v8, s31, v8")
    k("v_mov_b32 v44, 0\nv_mov_b32 v45, 0\nv_mov_b32 v46, 0\nv_mov_b32 v47, 0\nds_write_b128 v8, v[44:47]")
    srd_off(k, 16, WS_HT, 2621440)
    k("s_waitcnt lgkmcnt(0)")
    dt_calc(k)
    vm.wait("par")
    if diag: vm.stamp(1)
    kgen_pass(k, False)
    ACC = 44
    k("v_lshlrev_b32 v9, 4, v3\nv_lshlrev_b32 v10, 3, v4\nv_add_u32 v10, v9, v10\ns_add_u32 s27, s30, " + str(4088 - 1536) + "\nv_sub_u32 v10, s27, v10")
    k("v_lshlrev_b32 v11, 10, v4\nv_add_u32 v11, v9, v11\ns_add_u32 s27, s30, " + str(2040 - 512) + "\nv_sub_u32 v11, s27, v11")
    k("v_and_b32 v12, 1, v3\nv_lshlrev_b32 v12, 1, v12\nv_add_u32 v12, v11, v12\nv_subrev_u32 v12, 2, v12")
    k(f"v_cmp_eq_u32 vcc, 32, v1\nv_mov_b32 v13, s30\nv_add_u32 v14, {3*KC_P}, v13\nv_mov_b32 v16, 0\nv_cndmask_b32 v13, v14, v13, vcc")
    k(f"v_mov_b32 v17, 0\nv_lshrrev_b32 v14, 2, v1\nv_and_b32 v14, 3, v14\nv_mul_u32_u24 v14, {KC_P}, v14\nv_and_b32 v15, 3, v1\nv_lshl_add_u32 v14, v15, 3, v14\nv_add_u32 v14, s30, v14")
    k("v_cmp_eq_u32 vcc, 0, v4\nv_add_u32 v8, s30, v7\nds_write_b64 v14, v[16:17] offset:4096")
    k(f"s_lshl_b32 s27, s25, 2\ns_add_u32 s27, s27, {FLG}\nv_mov_b32 v60, s27\ns_mul_i32 s27, s25, 8704\ns_add_u32 s27, s27, {SB}\nv_add_u32 v61, s27, v7")
    if diag: stamp(k, 6)
    k("S_C_PW:\nds_read_b32 v62, v60\ns_waitcnt lgkmcnt(0)\nv_readfirstlane_b32 s27, v62\ns_cmp_lg_u32 s27, 0\ns_cbranch_scc1 S_C_PG\ns_sleep 1\ns_branch S_C_PW\nS_C_PG:")
    for i in range(4): k(f"ds_read_b128 {vr(64+4*i,4)}, v61 offset:{1024*i}")
    k("s_waitcnt lgkmcnt(0)")
    for i in range(8): k(f"v_pk_add_f32 {vr(ACC+2*i,2)}, {vr(ACC+2*i,2)}, {vr(64+2*i,2)}")
    a = lambda i: f"v{ACC+i}"
    for cp in range(2):
        k(f"v_cvt_pk_bf16_f32 v{20+2*cp}, {a(12+cp)}, {a(12+cp)}\nv_mov_b32 v{21+2*cp}, v{20+2*cp}")
        k(f"ds_write_b64 v11, {vr(20+2*cp,2)} offset:{512-512*cp}\nds_write_b64 v11, {vr(20+2*cp,2)} offset:{512-512*cp+8}")
    for cp in range(2): k(f"ds_write_b16 v12, v{20+2*cp} offset:{512-512*cp}")
    k(f"v_cvt_pk_bf16_f32 v24, {a(14)}, {a(14)}\nv_mov_b32 v25, v24\nds_write_b64 v13, v[24:25]")
    for c in range(2):
        k(f"v_cndmask_b32 v26, {a(9+2*c)}, {a(8+2*c)}, vcc")
        k(f"v_cvt_pk_bf16_f32 v{28+2*c}, {a(9+2*c)}, v26\nv_cvt_pk_bf16_f32 v{29+2*c}, {a(8+2*c)}, {a(8+2*c)}")
        k(f"ds_write_b64 v10, {vr(28+2*c,2)} offset:{1536-2*(512+256*c)}")
    k(f"v_cvt_pk_bf16_f32 v32, {a(6)}, {a(5)}\nv_cvt_pk_bf16_f32 v33, {a(4)}, {a(4)}\nds_write_b64 v10, v[32:33] offset:{1536-512}")
    k(f"v_cvt_pk_bf16_f32 v34, {a(3)}, {a(2)}\nv_cvt_pk_bf16_f32 v35, {a(1)}, {a(0)}\nds_write_b64 v10, v[34:35] offset:1536")
    for i in range(4):
        k(f"ds_read_b128 {vr(64+8*i,4)}, v8 offset:{1024*i}\nds_read_b64 {vr(68+8*i,2)}, v8 offset:{1024*i+16}")
    CA = 16; KF = [48, 112]; UF = [80, 144]
    vKa, vUa = 2, 3
    k("v_and_b32 v13, 15, v1\nv_lshrrev_b32 v9, 4, v1")
    k(f"v_sub_u32 v10, 3, v13\nv_and_b32 v10, 3, v10\nv_mul_u32_u24 v10, {KC_P}, v10")
    k("v_lshrrev_b32 v11, 2, v13\nv_lshlrev_b32 v11, 3, v11\nv_sub_u32 v10, v10, v11\nv_lshlrev_b32 v11, 4, v9\nv_sub_u32 v10, v10, v11")
    k(f"s_add_u32 s27, s30, {4104-3584}\nv_add_u32 v{vKa}, s27, v10")
    k(f"v_lshlrev_b32 v10, 5, v13\nv_sub_u32 v10, v10, v11\ns_add_u32 s27, s31, 496\nv_add_u32 v{vUa}, s27, v10")
    k("v_lshrrev_b32 v12, 3, v13\nv_mul_u32_u24 v12, 0x28000, v12\nv_and_b32 v11, 7, v13\nv_lshl_add_u32 v12, v11, 5, v12")
    k("v_lshrrev_b32 v11, 1, v9\nv_lshl_add_u32 v12, v11, 4, v12\nv_and_b32 v11, 1, v9\nv_mul_u32_u24 v11, 0x50000, v11\nv_add_u32 v12, v12, v11")
    k(f"v_lshlrev_b32 v10, 6, v13\nv_lshl_add_u32 v10, v9, 4, v10\ns_lshl_b32 s27, s25, 13\ns_add_u32 s27, s27, {ZA}\nv_add_u32 v10, s27, v10\ns_lshl_b32 s29, s26, 8")
    for i in range(4):
        b = 64 + 8 * i; o = 176 + 12 * i
        k(f"s_waitcnt lgkmcnt({2*(3-i)+3*i})")
        for j in range(4): k(f"v_alignbit_b32 v{o+j}, v{b+j+1}, v{b+j}, 16")
        k(f"ds_write_b128 v8, {vr(o,4)} offset:{KC_P+1024*i}")
        for j in range(4): k(f"v_mov_b32 v{o+4+j}, v{b+j+1}")
        k(f"ds_write_b128 v8, {vr(o+4,4)} offset:{2*KC_P+1024*i}")
        for j in range(4): k(f"v_alignbit_b32 v{o+8+j}, v{b+j+2}, v{b+j+1}, 16")
        k(f"ds_write_b128 v8, {vr(o+8,4)} offset:{3*KC_P+1024*i}")
    def kreads(s): return [x for i in range(8) for x in (f"ds_read_b64 {vr(KF[s]+4*i,2)}, v{vKa} offset:{(7-i)*512}", f"ds_read_b64 {vr(KF[s]+4*i+2,2)}, v{vKa} offset:{(7-i)*512+8}")]
    def ureads(s): return [f"ds_read_b128 {vr(UF[s]+4*i,4)}, v{vUa} offset:{512*i}" for i in range(8)]
    def reads(s):
        a_, b_ = kreads(s), ureads(s)
        r = []
        for i in range(8): r += [b_[i], a_[2*i], a_[2*i+1]]
        r.append(f"v_subrev_u32 v{vKa}, 64, v{vKa}\nv_subrev_u32 v{vUa}, 64, v{vUa}")
        return r
    def residue(ms, rd, tail=None):
        rd = list(rd)
        pairs = [(sg, be) for sg in range(8) for be in range(8 - sg)]
        for n, (sg, be) in enumerate(pairs):
            a = CA + 4 * (sg + be)
            if n == 35 and tail: k(tail)
            k(f"v_mfma_f32_16x16x32_bf16 {vr(a,4)}, {vr(KF[ms]+4*sg,4)}, {vr(UF[ms]+4*be,4)}, {vr(a,4)}")
            if rd: k(rd.pop(0))
        assert not rd
    for r in kreads(0): k(r)
    for r in range(CA, CA + 32): k(f"v_mov_b32 v{r}, 0")
    if diag: stamp(k, 2)
    k("s_setprio 3\ns_barrier")
    if diag: stamp(k, 3)
    for r in ureads(0): k(r)
    k(f"v_subrev_u32 v{vKa}, 64, v{vKa}\nv_subrev_u32 v{vUa}, 64, v{vUa}")
    k("s_mov_b32 s36, 0\ns_waitcnt lgkmcnt(0)")
    k(".p2align 3\nS_LOOP:")
    residue(0, reads(1), "s_add_u32 s36, s36, 1\ns_waitcnt lgkmcnt(0)")
    k("s_cmp_lt_u32 s36, 4\ns_cbranch_scc0 S_TAIL")
    residue(1, reads(0), "s_waitcnt lgkmcnt(0)\ns_nop 0")
    k("s_branch S_LOOP\ns_nop 0")
    k(f"S_TAIL:\nv_mov_b32 v13, {FLG}")
    k("S_ZW:\nds_read_b32 v14, v13 offset:16\ns_waitcnt lgkmcnt(0)\nv_readfirstlane_b32 s27, v14\ns_cmp_lt_u32 s27, 4\ns_cbranch_scc1 S_ZW\n.p2align 3")
    residue(1, [f"ds_read_b128 {vr(KF[0]+4*b,4)}, v10 offset:{1024*b}" for b in range(8)])
    if diag: stamp(k, 4)
    k("s_waitcnt lgkmcnt(0)")
    for bp in range(4):
        o = UF[0] + 4 * bp
        for bb in range(2):
            b = 2 * bp + bb; a = CA + 4 * b
            for hx in range(2):
                k(f"v_pk_add_f32 {vr(a+2*hx,2)}, {vr(a+2*hx,2)}, {vr(KF[0]+4*b+2*hx,2)}")
                k(f"v_cvt_pk_bf16_f32 v{o+2*bb+hx}, v{a+2*hx}, v{a+2*hx+1}")
        k("s_nop 1")
        k(f"v_permlane16_swap_b32 v{o}, v{o+2}\nv_permlane16_swap_b32 v{o+1}, v{o+3}")
        k(f"buffer_store_dwordx4 {vr(o,4)}, v12, s[16:19], s29 offen sc1\ns_add_u32 s29, s29, 0xa0000")
    k("s_waitcnt vmcnt(0)")
    if diag: stamp(k, 5)
    k("v_mov_b32 v14, 1\ns_mov_b64 exec, 1\nds_add_rtn_u32 v15, v13, v14 offset:20\ns_waitcnt lgkmcnt(0)\nv_readfirstlane_b32 s27, v15\ns_mov_b64 exec, -1")
    k("s_cmp_lg_u32 s27, 3\ns_cbranch_scc1 M_FFN_C")
    k(f"s_and_b32 s47, s33, 15\ns_lshl_b32 s47, s47, 8\ns_add_u32 s47, s47, {WS_CNT+C_S2*256}\ns_mov_b32 s49, 1\ns_atomic_add s49, s[4:5], s47\ns_branch M_FFN_C")
```

```python
from m8_common import *
import m8_ffn, m8_ssm
HDR = open("cdna_kernels/" + KN + ".s.ref").read().split("; Override launch")[0]
def gen_m8(diag=False, THR=10, **kw):
    k = Kern(KN + "_kernel", 256, 512, m8_ffn.M8_LDS, vgpr=256, sgpr=100)
    k("s_cmp_ge_u32 s2, 256\ns_cbranch_scc1 M_END")
    if diag: stamp(k, 15)
    k(f"s_load_dwordx2 s[4:5], s[0:1], {ARG['ws']}")
    k.code_prefetch("M_END", vdst=255, stride=7)
    k("v_readfirstlane_b32 s24, v0\nv_and_b32 v1, 63, v0\ns_lshr_b32 s24, s24, 6\ns_and_b32 s25, s24, 3\ns_and_b32 s20, s2, 7\ns_lshr_b32 s21, s2, 3")
    k("s_cmp_ge_u32 s2, 160\ns_cbranch_scc1 M_J\ns_cmp_ge_u32 s24, 4\ns_cbranch_scc1 M_C")
    m8_ssm.conv_L(k, diag)
    k("M_C:")
    m8_ssm.conv_C(k, diag)
    k("M_J:")
    m8_ssm.job_wg(k, diag, THR)
    k("M_FFN_L:")
    m8_ffn.ffn_L(k, diag, False, **{a: b for a, b in kw.items() if a in ("A0", "IW", "IM", "X", "H0", "TA")})
    k("M_FFN_C:")
    m8_ffn.ffn_C(k, diag, False, **{a: b for a, b in kw.items() if a in ("N1", "X", "H0", "P2")})
    k("M_END:\ns_endpgm")
    return k
def single(k):
    o = HDR + f"; @launch grid=({k.grid},1,1) block=({k.block},1,1) lds={k.lds}\n"
    o += '.amdgcn_target "amdgcn-amd-amdhsa--gfx950"\n.text\n' + k.text() + '.section .rodata,"a"\n.p2align 6\n' + k.desc()
    return o
if __name__ == "__main__":
    open("m8.s", "w").write(single(gen_m8()))
    open("m8_diag.s", "w").write(single(gen_m8(diag=True)))
```

```python
from asmlib import *
from layout import *
import struct, math
def hexf(x): return "0x%08x" % struct.unpack("<I", struct.pack("<f", x))[0]
def vr(a, n=1): return f"v{a}" if n == 1 else f"v[{a}:{a+n-1}]"
def srd_off(k, d, off, size):
    k(f"s_add_u32 s{d}, s4, {off}\ns_addc_u32 s{d+1}, s5, 0\ns_and_b32 s{d+1}, s{d+1}, 0xffff\ns_mov_b32 s{d+2}, {size}\ns_mov_b32 s{d+3}, 0x20000")
STAMP_BASE = 0x3000000
DBGSEL = None
def stamp_setup(k): pass
def stamp(k, slot):
    k(f"s_memrealtime s[94:95]\ns_memtime s[96:97]\ns_waitcnt lgkmcnt(0)\nv_writelane_b32 v254, s94, {2*slot}\nv_writelane_b32 v254, s96, {2*slot+1}")
def stamp_flush(k):
    k(f"s_add_u32 s88, s4, {STAMP_BASE}\ns_addc_u32 s89, s5, 0\ns_and_b32 s89, s89, 0xffff\ns_mov_b32 s90, 0x200000\ns_mov_b32 s91, 0x20000")
    k("s_lshl_b32 s92, s2, 10\ns_lshl_b32 s93, s24, 7\ns_add_u32 s92, s92, s93\nv_lshlrev_b32 v253, 2, v1\ns_mov_b64 exec, 0xffffffff")
    k("buffer_store_dword v254, v253, s[88:91], s92 offen")
    if DBGSEL:
        L = k.lab("dbgsel")
        k(f"s_load_dwordx2 s[88:89], s[0:1], {ARG['dbg']}\ns_lshl_b32 s92, s2, 3\ns_add_u32 s92, s92, s24\ns_waitcnt lgkmcnt(0)\ns_mov_b64 exec, 1\nv_mov_b32 v253, 0")
        for i, (wg, wave, slot) in enumerate(DBGSEL):
            k(f"s_cmp_lg_u32 s92, {wg*8+wave}\ns_cbranch_scc1 {L}_{i}\nv_readlane_b32 s93, v254, {2*slot}\ns_nop 3\nv_mov_b32 v252, s93\nglobal_store_dword v253, v252, s[88:89] offset:{12+4*i}\n{L}_{i}:")
class VM:
    def __init__(s, k): s.k = k; s.q = []
    def __call__(s, txt, tag=None):
        s.k(txt)
        for ln in txt.split("\n"):
            if ln.strip().startswith(("buffer_", "global_")): s.q.append(tag)
    def n_after(s, tag):
        idx = max(i for i, t in enumerate(s.q) if t == tag)
        return len(s.q) - 1 - idx
    def wait(s, tag, extra=""):
        n = s.n_after(tag); assert n <= 63, n
        s.k(f"s_waitcnt vmcnt({n}){extra}")
    def stamp(s, slot): stamp(s.k, slot)
def cmul(k, d, z, m, t):
    k(f"v_pk_mul_f32 {vr(t,2)}, {vr(z,2)}, {vr(m,2)} op_sel_hi:[0,1]")
    k(f"v_pk_fma_f32 {vr(d,2)}, {vr(z,2)}, {vr(m,2)}, {vr(t,2)} op_sel:[1,1,0] op_sel_hi:[1,0,1] neg_lo:[0,1,0]")
C_S3 = 0
C_S2 = 16
G_S2 = 20
C_W  = 28
G_W  = 29
C_M  = 36
NCNT = 52
SPIN = 0x40000
```

```python
import sys, json
SEL = [(37,4,15,"start"), (37,4,1,"par"), (37,0,2,"xs"), (37,0,4,"ok"), (37,4,3,"cgo"), (37,4,5,"drn"), (210,0,1,"Jx"), (210,0,3,"wd"), (210,7,4,"cs"), (37,0,8,"S2"), (37,4,9,"lend"), (37,4,11,"go"), (37,4,14,"end")]
if len(sys.argv) > 1:
    d = json.loads(sys.argv[1])[3:]
    print(", ".join("%s %.2f" % (s[3], (x - d[0]) / 100) for s, x in zip(SEL, d)))
else:
    import m8_common
    m8_common.DBGSEL = [s[:3] for s in SEL]
    import gen_m8
    open("m8_dbg.s", "w").write(gen_m8.single(gen_m8.gen_m8(diag=True)))
```

```python
from m8_common import *
SLOT = 24576; R = 4; NST = 20
RES = 0; CSM = 12288; M8_LDS = 163840
SLB = [112640, 137216, 16384, 40960]
HB0 = 16384; HSL = 16384; NHS = 9; RED = HB0 + 5 * HSL; NRD = 14

MAP2 = "42"
S2SL = 1
OUTF = ""
def tile_ids(k):
    k("s_and_b32 s22, s20, 3\ns_lshl_b32 s22, s22, 2\ns_and_b32 s26, s21, 3\ns_add_u32 s22, s22, s26")
    k("s_lshr_b32 s23, s20, 2\ns_mul_i32 s23, s23, 7\ns_lshr_b32 s26, s21, 2\ns_add_u32 s23, s23, s26")
    if MAP2 == "81":
        k("s_lshl_b32 s44, s20, 2\ns_and_b32 s26, s21, 3\ns_add_u32 s44, s44, s26\ns_lshr_b32 s45, s21, 2")
    else:
        k("s_and_b32 s44, s20, 3\ns_lshl_b32 s44, s44, 3\ns_and_b32 s26, s21, 7\ns_add_u32 s44, s44, s26")
        k("s_lshr_b32 s45, s20, 2\ns_lshl_b32 s45, s45, 2\ns_lshr_b32 s26, s21, 3\ns_add_u32 s45, s45, s26")
    k(f"s_mul_i32 s27, s45, {WD_DT}\ns_add_u32 s27, s27, {WS_WD}")
    srd_off(k, 52, "s27", WD_DT)
    srd_off(k, 40, WS_RS, 0xC000)
    k("v_lshlrev_b32 v6, 4, v1")

def a_loads(isL):
    l = []
    for s in range(NRD):
        if isL:
            for i in range(3): l.append(f"buffer_load_dwordx4 {vr(64+12*s+4*i,4)}, v6, s[52:55], s50 offen offset:{i*1024} sc1" + ("\ns_add_u32 s50, s50, 20480" if i == 2 else ""))
        else:
            for i in range(2): l.append(f"buffer_load_dwordx4 {vr(16+8*s+4*i,4)}, v6, s[52:55], s50 offen offset:{i*1024} sc1" + ("\ns_add_u32 s50, s50, 20480" if i == 1 else ""))
    return l

def poll_vec(k, vm, name, cnt0, n, need_reg, issue=True, check=True, tag="pw"):
    if issue: vm(f"buffer_load_dword v9, v8, s[36:39], 0 offen sc1", tag)
    if check:
        vm.wait(tag)
        k(f"s_mov_b32 s48, 0\n{name}:\nv_cmp_gt_u32 vcc, {need_reg}, v9\ns_add_u32 s48, s48, 1\ns_cbranch_vccz {name}_OK")
        k(f"s_sleep 4\nbuffer_load_dword v9, v8, s[36:39], 0 offen sc1\ns_cmp_lt_u32 s48, {SPIN}\ns_waitcnt vmcnt(0)\ns_cbranch_scc1 {name}\n{name}_OK:")

def res_dma(k, vm):
    srd_off(k, 56, WS_HT, 2621440)
    k("s_lshr_b32 s26, s44, 1\ns_mul_i32 s26, s26, 163840\ns_mul_i32 s27, s45, 20480\ns_add_u32 s26, s26, s27")
    k(f"s_and_b32 s27, s44, 1\ns_lshl_b32 s27, s27, 7\ns_add_u32 s26, s26, s27\ns_mul_i32 s27, s25, {24*256}\ns_add_u32 s26, s26, s27")
    k("v_lshrrev_b32 v10, 3, v1\nv_lshlrev_b32 v10, 8, v10\nv_and_b32 v11, 7, v1\nv_lshl_add_u32 v10, v11, 4, v10")
    k(f"s_mul_i32 s46, s25, 3072\ns_add_u32 s46, s46, {RES}")
    for j in range(3):
        vm(f"s_add_u32 m0, s46, {j*1024}\ns_nop 0\nbuffer_load_dwordx4 v10, s[56:59], s26 offen sc1 lds\ns_add_u32 s26, s26, 2048", "res")

def wpoll_prep(k):
    k(f"v_mov_b32 v8, {G_W*256}\nv_mov_b32 v7, 1")

def s2_wait(k, name, standalone):
    if not standalone:
        k(f"s_cmp_lg_u32 s24, 0\ns_cbranch_scc1 {name}_OK")
        k(f"s_lshl_b32 s26, s20, 8\ns_add_u32 s26, s26, {G_S2*256}\nv_and_b32 v8, 3, v1\nv_lshlrev_b32 v8, 2, v8\ns_mov_b32 s48, 0")
        k(f"{name}:\nbuffer_load_dword v9, v8, s[36:39], s26 offen sc1\ns_add_u32 s48, s48, 1\ns_waitcnt vmcnt(0)")
        k(f"v_cmp_eq_u32 vcc, 0, v9\ns_cbranch_vccz {name}_OK\ns_sleep {S2SL}\ns_cmp_lt_u32 s48, {SPIN}\ns_cbranch_scc1 {name}")
        k(f"{name}_OK:")
    k("s_barrier")

def ffn_L(k, diag, standalone, AX=1, IW=3, IM=17, X='', H0=4, TA=(6, 4, 3)):
    vm = VM(k)
    tile_ids(k)
    srd_off(k, 36, WS_CNT, NCNT * 256)
    k("s_mul_i32 s50, s25, 5120")
    if "z" in X: k("s_mov_b32 s54, 0")
    al = a_loads(True)
    k("s_cmp_ge_u32 s21, 28\ns_cbranch_scc1 F_L_STAT")
    k(f"s_load_dwordx4 s[28:31], s[0:1], {ARG['Wg']}")
    k(f"s_mul_i32 s26, s22, 163840\ns_add_u32 s26, s26, {WS_HT}")
    srd_off(k, 8, "s26", 163840)
    k("v_lshrrev_b32 v10, 4, v1\nv_lshlrev_b32 v11, 5, v10\nv_xor_b32 v2, v6, v11\nv_xor_b32 v3, 128, v2")
    k("v_and_b32 v4, 255, v2\nv_xor_b32 v5, 128, v4\nv_mul_u32_u24 v10, 3456, v10")
    k("s_cmp_eq_u32 s23, 13\ns_cselect_b32 s26, 1, 2\ns_lshl_b32 s26, s26, 7\nv_mov_b32 v11, 0x7fff0000")
    k("v_cmp_gt_u32 vcc, s26, v4\nv_add_u32 v4, v4, v10\ns_nop 0\nv_cndmask_b32 v4, v11, v4, vcc")
    k(f"v_cmp_gt_u32 vcc, s26, v5\nv_add_u32 v5, v5, v10\nv_add_u32 v5, {4*3456-1024}, v5\nv_cndmask_b32 v5, v11, v5, vcc")
    k(f"s_lshl_b32 s32, s25, 11\ns_mov_b32 s34, s32\ns_mul_i32 s33, s25, {8*3456}\ns_lshl_b32 s26, s23, 8\ns_add_u32 s33, s33, s26")
    k("s_waitcnt lgkmcnt(0)")
    k.srd(12, 28, 0 if "w" in X else 640 * 3456); k.srd(16, 30, 0 if "w" in X else 640 * 3456)
    def dmaW(st):
        sl = SLB[st % R]
        vm(f"s_add_u32 m0, s34, {sl+8192}\ns_nop 0\nbuffer_load_dwordx4 v4, s[12:15], s33 offen lds\nbuffer_load_dwordx4 v5, s[12:15], s33 offen offset:1024 lds", ("st", st))
        vm(f"s_add_u32 m0, s34, {sl+16384}\ns_nop 0\nbuffer_load_dwordx4 v4, s[16:19], s33 offen lds\nbuffer_load_dwordx4 v5, s[16:19], s33 offen offset:1024 lds\ns_add_u32 s33, s33, {32*3456}", ("st", st))
    def dmaT(st):
        sl = SLB[st % R]
        vm(f"s_add_u32 m0, s34, {sl}\ns_nop 0\nbuffer_load_dwordx4 v2, s[8:11], s32 offen sc1 lds\nbuffer_load_dwordx4 v3, s[8:11], s32 offen offset:1024 sc1 lds\ns_add_u32 s32, s32, 8192", ("st", st))
    dmaW(0); dmaW(1)
    if diag: vm.stamp(7)
    s2_wait(k, "F_L_S2", standalone)
    if diag: vm.stamp(8)
    dmaT(0); dmaT(1); dmaT(2); dmaW(2)
    wpoll_prep(k)
    for i in range(NST):
        vm.wait(("st", i) if i < NST - 1 else "m"); k("s_barrier")
        if i + R - 1 < NST: dmaT(i + R - 1); dmaW(i + R - 1)
        if i == 18: res_dma(k, vm)
        if i == IW - 3: poll_vec(k, vm, "F_L_PW", 0, 1, "v7", check=False)
        if i == IW: poll_vec(k, vm, "F_L_PW", 0, 1, "v7", issue=False)
        if i == 10:
            k(f"v_lshrrev_b32 v10, 5, v1\nv_mul_u32_u24 v10, {1792*4-512}, v10\nv_add_u32 v10, v10, v6\ns_lshl_b32 s26, s23, 9\ns_add_u32 s26, s26, {WS_CS-WS_RS}")
            vm(f"s_mov_b32 m0, {CSM}\ns_nop 0\nbuffer_load_dwordx4 v10, s[40:43], s26 offen sc1 lds", "cs")
            k(f"s_lshl_b32 s26, s22, 8\ns_add_u32 s26, s26, {C_M*256}\nv_mov_b32 v8, s26\nv_mov_b32 v7, 2")
        if i == IM - 3: poll_vec(k, vm, "F_L_PM", 0, 1, "v7", check=False, tag="pm")
        if i == IM:
            poll_vec(k, vm, "F_L_PM", 0, 1, "v7", issue=False, tag="pm")
            k(f"s_lshl_b32 s26, s22, 9\ns_add_u32 s26, s26, {WS_M-WS_RS}")
            vm(f"s_mov_b32 m0, {CSM+1024}\ns_nop 0\nbuffer_load_dwordx4 v6, s[40:43], s26 offen sc1 lds", "m")
        if i >= IW:
            n = (int(AX * (i + 1)) - int(AX * i)) if i + R - 1 < NST else TA[i - (NST - R + 1)]
            for _ in range(n):
                if al: vm(al.pop(0), "A")
    nrest = len(al)
    k("s_lshl_b32 s47, s22, 8\ns_branch F_L_ARR")
    k("F_L_STAT:")
    vm2 = VM(k)
    s2_wait(k, "F_L_S2B", standalone)
    wpoll_prep(k)
    poll_vec(k, vm2, "F_L_PW2", 0, 1, "v7")
    k("s_barrier\ns_barrier")
    if "n" not in X:
        k(f"s_lshr_b32 s26, s20, 2\ns_lshl_b32 s26, s26, 2\ns_add_u32 s26, s26, s21\ns_sub_u32 s26, s26, 28\ns_mul_i32 s26, s26, {WD_DT}\ns_add_u32 s26, s26, {WS_WD}")
        srd_off(k, 8, "s26", WD_DT)
        k(f"s_lshl_b32 s26, s25, 13\ns_add_u32 s26, s26, {8*32768}\nv_lshlrev_b32 v10, 7, v1\ns_mov_b32 s27, 0")
        k("F_L_WARM:\nbuffer_load_dword v11, v10, s[8:11], s26 offen sc1\ns_sub_u32 s26, s26, 32768\ns_add_u32 s27, s27, 1\ns_cmp_lt_u32 s27, 9\ns_cbranch_scc1 F_L_WARM")
        k("s_waitcnt vmcnt(0)")
        if diag: stamp(k, 9)
    res_dma(k, vm2)
    for x in a_loads(True)[:42-nrest]: vm2(x, "A")
    k("s_sub_u32 s47, s2, 224\ns_lshr_b32 s47, s47, 1\ns_lshl_b32 s47, s47, 8")
    k("F_L_ARR:")
    k("s_barrier")
    k("s_cmp_lg_u32 s24, 0\ns_cbranch_scc1 F_L_NS")
    k(f"s_add_u32 s47, s47, {WS_CNT+C_S3*256}\ns_mov_b32 s49, 1\ns_atomic_add s49, s[4:5], s47")
    k("F_L_NS:")
    for x in al: k(x)
    k("s_cmp_lg_u32 s24, 0\ns_cbranch_scc1 F_L_GO")
    k(f"s_lshr_b32 s47, s44, 1\ns_lshl_b32 s47, s47, 8\ns_add_u32 s47, s47, {WS_CNT+C_S3*256}\ns_mov_b32 s48, 0")
    k("F_L_P3:\ns_mov_b32 s51, 0\ns_atomic_add s51, s[4:5], s47 glc\ns_waitcnt lgkmcnt(0)")
    k(f"s_add_u32 s48, s48, 1\ns_cmp_ge_u32 s51, 16\ns_cbranch_scc1 F_L_GO\ns_sleep 1\ns_cmp_lt_u32 s48, {SPIN}\ns_cbranch_scc1 F_L_P3")
    k("F_L_GO:")
    k("s_barrier")
    gemm2(k, diag, True, H0)

def gemm2(k, diag, isL, H0=4):
    vm = VM(k)
    NT = 3 if isL else 2
    I0 = 0 if isL else 3
    G = 16 if isL else 128
    areg = (lambda s, i: 64 + 12 * s + 4 * i) if isL else (lambda s, i: 16 + 8 * s + 4 * i)
    hbuf = (lambda r: 232 if r % 2 == 0 or r < 3 else 64) if isL else (lambda r: 160 + 16 * (r & 1))
    issued = [0]
    def dmaH(r):
        vm(f"s_add_u32 m0, s34, {HB0 + (r % NHS) * HSL}\ns_nop 0", None)
        for tp in range(4): vm(f"buffer_load_dwordx4 v{192+tp}, s[8:11], s32 offen offset:{tp*1024} sc1 lds", ("h", r))
        k("s_add_u32 s32, s32, 16384")
        issued[0] = r + 1
    def dmaH_parts(r):
        def part(tp):
            if tp == 0: vm(f"s_add_u32 m0, s34, {HB0 + (r % NHS) * HSL}\ns_nop 0\ns_nop 0", None)
            vm(f"buffer_load_dwordx4 v{192+tp}, s[8:11], s32 offen offset:{tp*1024} sc1 lds", ("h", r))
            if tp == 3: k("s_add_u32 s32, s32, 16384")
        issued[0] = r + 1
        return [(lambda tp=tp: part(tp)) for tp in range(4)]
    if not isL:
        for r in range(2): dmaH(r)
    if diag: vm.stamp(11)
    k("s_lshl_b32 s28, s44, 8\ns_lshl_b32 s30, s25, 6\ns_add_u32 s28, s28, s30\nv_and_b32 v11, 15, v1\nv_lshlrev_b32 v12, 2, v11")
    vm("buffer_load_dword v13, v12, s[40:43], s28 offen sc1", "rs")
    k(f"s_lshl_b32 s28, s25, 12\ns_add_u32 s28, s28, {HB0}\nv_add_u32 v2, s28, v6\nv_add_u32 v3, 0x10000, v2\nv_add_u32 v4, 0x20000, v2")
    for tp in range(1, 4):
        k(f"s_add_u32 s28, s25, {tp}\ns_and_b32 s28, s28, 3\ns_mul_i32 s28, s28, 15360\ns_add_u32 s28, s28, {RED+(tp-1)*5120}\nv_add_u32 v{6+tp}, s28, v6")
    k(f"s_mul_i32 s28, s25, 15360\ns_add_u32 s28, s28, {RED}\nv_add_u32 v14, s28, v6")
    k("v_lshrrev_b32 v5, 4, v1\nv_mul_u32_u24 v5, 20, v5\nv_lshrrev_b32 v10, 2, v1\nv_and_b32 v10, 3, v10\nv_add_u32 v5, v5, v10")
    k(f"v_lshlrev_b32 v5, 7, v5\nv_and_b32 v10, 3, v1\nv_lshl_add_u32 v5, v10, 3, v5\ns_lshl_b32 s28, s25, 5\ns_add_u32 s28, s28, {RES}\nv_add_u32 v5, s28, v5")
    k(f"s_load_dwordx2 s[6:7], s[0:1], {ARG['out']}")
    k("s_lshl_b32 s28, s44, 6\ns_lshl_b32 s30, s25, 4\ns_add_u32 s28, s28, s30\ns_mul_i32 s28, s28, 1280\ns_mul_i32 s30, s45, 160\ns_add_u32 s28, s28, s30")
    k("v_mul_u32_u24 v11, 1280, v11\nv_lshrrev_b32 v12, 4, v1\nv_mul_u32_u24 v12, 40, v12\nv_add_u32 v11, v11, v12")
    def hreads(r):
        sl = r % NHS
        return [f"ds_read_b128 {vr(hbuf(r)+4*tp,4)}, v{2+sl//4} offset:{(sl%4)*HSL+tp*1024}" for tp in range(4)]
    def mfmas(r, fill):
        order = [0, 1, 2, 3] if r < NRD - 1 else [3, 2, 1, 0]
        pend = []
        for tp in order:
            for i in range(NT):
                a = G + 4 * (NT * tp + i)
                k(f"v_mfma_f32_16x16x32_bf16 {vr(a,4)}, {vr(areg(r,i),4)}, {vr(hbuf(r)+4*tp,4)}, {vr(a,4) if r else 0}")
                if fill: fill.pop(0)()
                if r == NRD - 1 and tp: pend.append(f"ds_write_b128 v{6+tp}, {vr(a,4)} offset:{(I0+i)*1024}")
        while fill: fill.pop(0)()
        return pend
    if not isL:
        for r in range(2, H0): dmaH(r)
    if isL: k("s_waitcnt vmcnt(0) lgkmcnt(0)")
    else: vm.wait(("h", 0), " lgkmcnt(0)")
    k.srd(16, 6, 2621440)
    k("s_barrier")
    if diag: vm.stamp(12)
    for x in hreads(0): k(x)
    for r in range(NRD):
        pipelined = not (isL and r < 2)
        todo = [issued[0]] if (not isL and issued[0] < NRD) else []
        if r + 1 < NRD:
            if pipelined:
                if not isL: vm.wait(("h", r + 1), " lgkmcnt(0)")
                else: k("s_waitcnt lgkmcnt(0)")
                k("s_barrier")
                fill = [(lambda x=x: k(x)) for x in hreads(r + 1)]
                if todo:
                    d = dmaH_parts(todo[0])
                    fill = [fill[0], d[0], fill[1], d[1], fill[2], d[2], fill[3], d[3]]
                mfmas(r, fill)
            else:
                k("s_waitcnt lgkmcnt(0)\ns_barrier")
                mfmas(r, [])
                for x in hreads(r + 1): k(x)
        else:
            k("s_waitcnt lgkmcnt(0)")
            pend = mfmas(r, [])
    k("s_nop 4")
    for x in pend: k(x)
    if diag: vm.stamp(13)
    RB = 64 if isL else 16
    for i in range(NT): k(f"ds_read_b64_tr_b16 {vr(RB+2*i,2)}, v5 offset:{(I0+i)*512}")
    k("s_waitcnt lgkmcnt(0)\ns_barrier")
    PB = RB + 8
    for sl in range(3):
        for i in range(NT): k(f"ds_read_b128 {vr(PB+4*(NT*sl+i),4)}, v14 offset:{sl*5120+(I0+i)*1024}")
    UB = PB + 40
    for r in range(2 * NT): k(f"v_lshlrev_b32 v{UB+2*r}, 16, v{RB+r}\nv_and_b32 v{UB+1+2*r}, 0xffff0000, v{RB+r}")
    k("s_waitcnt vmcnt(0)\nv_mov_b32 v12, v13")
    for sl in range(3):
        k(f"s_waitcnt lgkmcnt({NT*(2-sl)})")
        for r in range(0, 4 * NT, 2): k(f"v_pk_add_f32 {vr(G+r,2)}, {vr(G+r,2)}, {vr(PB+4*NT*sl+r,2)}")
    for r in range(0, 4 * NT, 2):
        k(f"v_pk_fma_f32 {vr(G+r,2)}, {vr(G+r,2)}, v[12:13], {vr(UB+r,2)}\nv_cvt_pk_bf16_f32 v{RB+r//2}, v{G+r}, v{G+r+1}")
    if isL: k(f"buffer_store_dwordx4 {vr(RB,4)}, v11, s[16:19], s28 offen {OUTF}\nbuffer_store_dwordx2 {vr(RB+4,2)}, v11, s[16:19], s28 offen offset:16 {OUTF}")
    else: k(f"buffer_store_dwordx4 {vr(RB,4)}, v11, s[16:19], s28 offen offset:24 {OUTF}")
    if diag:
        k("s_waitcnt vmcnt(0)"); stamp(k, 14); stamp_flush(k)
    k("s_endpgm")

def ffn_C(k, diag, standalone, N1=16, X='', H0=4, P2=3):
    ACC = 112; W = [16, 64]; T = [48, 96]
    TA = [[2, 3, 4, 5], [240, 241, 242, 243]]; WA = [[8, 9, 10, 11], [244, 245, 246, 247]]
    tile_ids(k)
    k("s_mul_i32 s50, s25, 5120\ns_add_u32 s50, s50, 3072")
    k("s_cmp_ge_u32 s21, 28\ns_cbranch_scc1 F_C_STAT")
    k("s_and_b32 s28, s25, 1\ns_lshr_b32 s29, s25, 1")
    k("v_lshrrev_b32 v12, 2, v1\nv_and_b32 v13, 7, v12\nv_lshlrev_b32 v13, 5, v13\nv_lshl_add_u32 v13, v12, 8, v13\nv_and_b32 v12, 3, v1\nv_lshl_add_u32 v13, v12, 3, v13")
    k("s_lshl_b32 s30, s28, 7\nv_xor_b32 v2, s30, v13\ns_lshl_b32 s30, s29, 7\ns_add_u32 s30, s30, 8192\nv_xor_b32 v8, s30, v13")
    for b in range(1, 4): k(f"v_xor_b32 v{TA[0][b]}, {32*b}, v2\nv_xor_b32 v{WA[0][b]}, {32*b}, v8")
    for b in range(4): k(f"v_add_u32 v{TA[1][b]}, {SLB[2]}, v{TA[0][b]}\nv_add_u32 v{WA[1][b]}, {SLB[2]}, v{WA[0][b]}")
    for b in range(4): k(f"v_add_u32 v{TA[0][b]}, {SLB[0]}, v{TA[0][b]}\nv_add_u32 v{WA[0][b]}, {SLB[0]}, v{WA[0][b]}")
    for r in range(ACC, ACC + 128): k(f"v_mov_b32 v{r}, 0")
    srd_off(k, 16, WS_H, 32 * H_T64)
    k("s_cmp_eq_u32 s23, 13\ns_cselect_b32 s31, s29, 0\ns_cmp_eq_u32 s31, 1\ns_cselect_b32 s18, 0, s18")
    k(f"s_lshl_b32 s26, s22, 1\ns_add_u32 s26, s26, s28\ns_mul_i32 s26, s26, {H_T64}\ns_lshl_b32 s27, s23, 14\ns_add_u32 s26, s26, s27\ns_lshl_b32 s27, s29, 13\ns_add_u32 s26, s26, s27\ns_add_u32 s27, s26, 4096")
    k(f"v_lshrrev_b32 v14, 4, v1\nv_lshlrev_b32 v14, 4, v14\ns_lshl_b32 s30, s29, 8\ns_add_u32 s30, s30, {CSM}\nv_add_u32 v14, s30, v14")
    k(f"v_and_b32 v15, 15, v1\nv_lshlrev_b32 v15, 2, v15\ns_lshl_b32 s30, s28, 8\ns_add_u32 s30, s30, {CSM+1024}\nv_add_u32 v15, s30, v15")
    def reads(st):
        s = st & 1; sl = st % R; b = sl // 2; o = (sl & 1) * SLOT
        t = [f"ds_read_b64_tr_b16 {vr(T[s]+4*tau+2*half, 2)}, v{TA[b][tau]} offset:{o+4096*half}" for tau in range(4) for half in range(2)]
        w = []
        for v in range(8):
            grp, mat, hi = v >> 2, (v >> 1) & 1, v & 1
            for half in range(2): w.append(f"ds_read_b64_tr_b16 {vr(W[s]+4*v+2*half, 2)}, v{WA[b][2*grp+hi]} offset:{o+8192*mat+4096*half}")
        return w[:2] + t + w[2:]
    def stage(st, fill, tail=None):
        ms = st & 1; n = 0
        for v in range(8):
            for tau in range(4):
                a = ACC + 16 * v + 4 * tau
                k(f"v_mfma_f32_16x16x32_bf16 {vr(a,4)}, {vr(W[ms]+4*v,4)}, {vr(T[ms]+4*tau,4)}, {vr(a,4)}")
                for x in fill[n]: k(x)
                if n == 30 and tail: k(tail)
                n += 1
    def lin(l): return [[x] for x in l] + [[] for _ in range(32 - len(l))]
    def epi_tile(grp, tau):
        a = ACC + 64 * grp + 4 * tau
        l = []; sel = tau & 1
        for mat in range(2):
            for hi in range(2):
                for j in range(2):
                    x = a + 32 * mat + 16 * hi + 2 * j
                    l.append(f"v_pk_fma_f32 {vr(x,2)}, {vr(16+16*grp+8*mat+4*hi+2*j,2)}, {vr(48+2*tau,2)}, {vr(x,2)}")
        for hi in range(2):
            for j in range(2): l.append(f"v_pk_mul_f32 {vr(a+16*hi+2*j,2)}, {vr(a+16*hi+2*j,2)}, {vr(a+32+16*hi+2*j,2)}")
        for hi in range(2):
            for j in range(2): l.append(f"v_cvt_pk_bf16_f32 v{a+32+2*hi+j}, v{a+16*hi+2*j}, v{a+16*hi+2*j+1}")
        l.append(f"buffer_store_dwordx4 {vr(a+32,4)}, v6, s[16:19], s{26+grp} offen offset:{tau*1024} sc1")
        return l
    k("s_setprio 3")
    k("s_barrier")
    k("s_mov_b32 s36, 0\ns_barrier")
    if diag: stamp(k, 8)
    for x in reads(0): k(x)
    k("s_waitcnt lgkmcnt(0)\ns_barrier")
    k(".p2align 3\nF_C_LOOP:")
    stage(0, lin(reads(1)), "s_waitcnt lgkmcnt(0)\ns_add_u32 s36, s36, 1"); k("s_barrier\ns_nop 0")
    stage(1, lin(reads(2)), "s_waitcnt lgkmcnt(0)\ns_cmp_lt_u32 s36, 5"); k("s_barrier\ns_nop 0")
    stage(2, lin(reads(3)), "s_waitcnt lgkmcnt(0)\ns_nop 0"); k("s_cbranch_scc0 F_C_TAIL\ns_barrier")
    stage(3, lin(reads(0)), "s_waitcnt lgkmcnt(0)\ns_nop 0"); k("s_barrier\ns_branch F_C_LOOP")
    k("F_C_TAIL:")
    fill = [[] for _ in range(32)]
    for i in range(8):
        grp_, mat_, hi_ = i >> 2, (i >> 1) & 1, i & 1
        fill[i].append(f"ds_read_b128 {vr(16+4*i,4)}, v14 offset:{128*grp_+512*mat_+64*hi_}")
    for tau in range(4): fill[8 + tau].append(f"ds_read2_b32 {vr(48+2*tau,2)}, v15 offset0:{16*tau} offset1:{16*tau}")
    fill[20].append("s_waitcnt lgkmcnt(0)\ns_nop 0")
    e = [x for tau in range(4) for x in epi_tile(0, tau)]
    for i in range(21, 32):
        for _ in range(0 if "e" in X else 2): fill[i].append(e.pop(0))
    stage(3, fill)
    if diag: stamp(k, 9)
    for x in e: k(x)
    for tau in range(4):
        for x in epi_tile(1, tau): k(x)
    k("s_branch F_C_ARR")
    k("F_C_STAT:")
    srd_off(k, 16, WS_HT, 2621440)
    k("s_sub_u32 s22, s2, 224\ns_lshr_b32 s26, s22, 1\ns_mul_i32 s26, s26, 163840\ns_and_b32 s27, s22, 1\ns_lshl_b32 s27, s27, 7\ns_add_u32 s26, s26, s27")
    k(f"s_mul_i32 s27, s25, {160*256}\ns_add_u32 s26, s26, s27")
    k("v_lshrrev_b32 v10, 3, v1\nv_lshlrev_b32 v10, 8, v10\nv_and_b32 v11, 7, v1\nv_lshl_add_u32 v10, v11, 4, v10")
    for r in range(16, 32): k(f"v_mov_b32 v{r}, 0")
    k("s_barrier")
    for i in range(20):
        k(f"buffer_load_dwordx4 {vr(112+4*i,4)}, v10, s[16:19], s26 offen offset:{(i&1)*2048} sc1" + ("\ns_add_u32 s26, s26, 4096" if i & 1 else ""))
    for i in range(20):
        k(f"s_waitcnt vmcnt({19-i})")
        for j in range(4):
            w = 112 + 4 * i + j
            k(f"v_lshlrev_b32 v32, 16, v{w}\nv_and_b32 v33, 0xffff0000, v{w}")
            k(f"v_pk_add_f32 {vr(16+2*j,2)}, {vr(16+2*j,2)}, v[32:33]\nv_pk_fma_f32 {vr(24+2*j,2)}, v[32:33], v[32:33], {vr(24+2*j,2)}")
    k("s_lshl_b32 s26, s25, 12\ns_add_u32 s26, s26, 16384\nv_lshlrev_b32 v10, 6, v1\nv_add_u32 v10, s26, v10")
    for j in range(4): k(f"ds_write_b128 v10, {vr(16+4*j,4)} offset:{16*j}")
    k("s_waitcnt lgkmcnt(0)\ns_barrier")
    k("s_cmp_lg_u32 s25, 0\ns_cbranch_scc1 F_C_PUB")
    k("v_lshrrev_b32 v10, 3, v1\nv_lshlrev_b32 v10, 6, v10\nv_and_b32 v11, 7, v1\nv_lshl_add_u32 v10, v11, 2, v10\nv_add_u32 v10, 16384, v10")
    k("v_mov_b32 v16, 0\nv_mov_b32 v17, 0")
    for g in range(4):
        for s in range(8): k(f"ds_read2_b32 {vr(32+2*s,2)}, v10 offset0:0 offset1:8\nv_add_u32 v10, 512, v10")
        k("s_waitcnt lgkmcnt(0)")
        for s in range(8): k(f"v_pk_add_f32 v[16:17], v[16:17], {vr(32+2*s,2)}")
    k(f"v_mul_f32 v16, {hexf(1.0/640)}, v16\nv_mul_f32 v17, {hexf(1.0/640)}, v17\nv_fma_f32 v17, -v16, v16, v17")
    k(f"v_max_f32 v17, 0, v17\nv_add_f32 v17, {hexf(1e-5)}, v17\nv_rcp_f32 v12, v17\nv_sub_f32 v13, 0, v16")
    k(f"s_lshl_b32 s26, s22, 8\nv_lshlrev_b32 v10, 2, v1\ns_add_u32 s27, s26, {WS_M-WS_RS}")
    k("buffer_store_dword v13, v10, s[40:43], s27 offen sc1\nbuffer_store_dword v12, v10, s[40:43], s26 offen sc1")
    k(f"s_lshr_b32 s47, s22, 1\ns_lshl_b32 s47, s47, 8\ns_add_u32 s47, s47, {WS_CNT+C_M*256}\ns_mov_b32 s49, 1\ns_waitcnt vmcnt(0)\ns_atomic_add s49, s[4:5], s47")
    if diag: stamp(k, 9)
    k("F_C_PUB:\ns_barrier")
    k("F_C_ARR:")
    al = a_loads(False)
    for x in al[:N1]: k(x)
    k(f"s_waitcnt vmcnt({N1})")
    if diag: stamp(k, 10)
    k("s_barrier")
    for x in al[N1:]: k(x)
    k(f"s_mul_i32 s26, s44, {H_T64}\ns_add_u32 s26, s26, {WS_H-3072}")
    srd_off(k, 8, "s26", H_T64 + 3072)
    for tp in range(4):
        k(f"s_add_u32 s28, s25, {tp}\ns_and_b32 s28, s28, 3\ns_lshl_b32 s28, s28, 10\ns_add_u32 s28, s28, {3072-tp*1024}\nv_add_u32 v{192+tp}, s28, v6")
    k(f"s_lshl_b32 s32, s25, 12\ns_mov_b32 s34, s32\ns_setprio {P2}")
    k("s_barrier")
    gemm2(k, diag, False, H0)

def gen_ffn8(diag=False, **kw):
    k = Kern("ffn8_kernel", 256, 512, M8_LDS, vgpr=256, sgpr=100)
    k("s_cmp_ge_u32 s2, 256\ns_cbranch_scc1 F_END")
    k(f"s_load_dwordx2 s[4:5], s[0:1], {ARG['ws']}")
    k.code_prefetch("F_END", vdst=255)
    k("v_readfirstlane_b32 s24, v0\nv_and_b32 v1, 63, v0\ns_lshr_b32 s24, s24, 6\ns_and_b32 s25, s24, 3\ns_and_b32 s20, s2, 7\ns_lshr_b32 s21, s2, 3\ns_waitcnt lgkmcnt(0)")
    if diag:
        stamp_setup(k); stamp(k, 0)
    k("s_cmp_ge_u32 s24, 4\ns_cbranch_scc1 F_C")
    ffn_L(k, diag, True, **{a: b for a, b in kw.items() if a in ("AX", "IW", "IM", "X", "H0", "TA")})
    k("F_C:")
    ffn_C(k, diag, True, **{a: b for a, b in kw.items() if a in ("N1", "X", "H0", "P2")})
    k("F_END:\ns_endpgm")
    return k
```

```python
from m8_common import *
KC_P = 4160; KC_CH = 4 * KC_P
UA = 4 * KC_CH; U_P = 4608
ZA = UA + 4 * U_P
FLG = ZA + 32768
SB = FLG + 1024 - (FLG % 1024)
JOBRED = 84 * 1024
RP = 272
assert SB + 4 * 8704 <= 161792, SB

def kgen_pass(k, hi_half, sprinkle=None, waddr=None):
    sp = list(sprinkle or [])
    def S():
        if sp: sp.pop(0)()
    ACC = 44
    WR = "ds_write_addtid_b32" if waddr is None else f"ds_write_b32 {waddr},"
    for i in range(6):
        k(f"v_and_b32 v{10+i}, 0xffff0000, v{200+i}" if hi_half else f"v_lshlrev_b32 v{10+i}, 16, v{200+i}")
    E1, E2, E4, E8, E256, Wc, Bc, Z, T, O = 20, 22, 24, 26, 28, 30, 32, 34, 36, 38
    k(f"v_mul_f32 v10, v6, v10\nv_mul_f32 v11, v6, v11\nv_mul_f32 v10, {hexf(math.log2(math.e))}, v10\nv_mul_f32 v11, {hexf(1/(2*math.pi))}, v11")
    k(f"v_mul_f32 v16, 0x43800000, v10\nv_mul_f32 v17, 0x43800000, v11\nv_fract_f32 v11, v11\nv_fract_f32 v17, v17")
    k(f"v_exp_f32 v10, v10\nv_cos_f32 v{E1}, v11\nv_sin_f32 v{E1+1}, v11\nv_exp_f32 v16, v16\nv_cos_f32 v{E256}, v17\nv_sin_f32 v{E256+1}, v17")
    k(f"v_mul_f32 v{E1}, v10, v{E1}\nv_mul_f32 v{E1+1}, v10, v{E1+1}\nv_mul_f32 v{E256}, v16, v{E256}\nv_mul_f32 v{E256+1}, v16, v{E256+1}")
    k(".p2align 3")
    cmul(k, E2, E1, E1, T); cmul(k, E4, E2, E2, T); cmul(k, E8, E4, E4, T)
    k(f"v_mov_b32 v{O}, 0x3f80\n{WR} v{O}")
    k(f"v_cvt_pk_bf16_f32 v{O+1}, v{E8}, -v{E8+1}\n{WR} v{O+1} offset:{RP}")
    src = E8
    for j in range(2, 32):
        cmul(k, Z, src, E8, T); src = Z
        o = O + (j & 1)
        k(f"v_cvt_pk_bf16_f32 v{o}, v{Z}, -v{Z+1}\n{WR} v{o} offset:{j*RP}")
        if j % 4 == 2: S()
    QF = 64; PF = 96
    for s in range(8): k(f"ds_read_b128 {vr(QF+4*s,4)}, v5 offset:{32*s}")
    cmul(k, Wc, 14, 12, T)
    k(f"v_mul_f32 v{Wc}, v6, v{Wc}\nv_mul_f32 v{Wc+1}, v6, v{Wc+1}")
    cnt = [0]
    def put(z, rows):
        o = O + (cnt[0] & 1); cnt[0] += 1
        k(f"v_cvt_pk_bf16_f32 v{o}, v{z}, v{z+1}")
        for r in rows: k(f"{WR} v{o} offset:{r*RP}")
        if cnt[0] % 5 == 0: S()
    put(Wc, [0]); src = Wc
    for j in range(1, 8):
        cmul(k, Z, src, E1, T); src = Z; put(Z, [j])
    cmul(k, Bc, Wc, E256, T); put(Bc, [8]); src = Bc
    for rows in ([9], [10, 12], [13], [14]):
        cmul(k, Z, src, E2, T); src = Z; put(Z, rows)
    for r0, r1, r2 in (([16], [17, 20], [21]), ([18], [19, 22], [23])):
        cmul(k, Bc, Bc, E256, T); put(Bc, r0)
        cmul(k, Z, Bc, E4, T); put(Z, r1)
        cmul(k, Z, Z, E4, T); put(Z, r2)
    for r in (24, 25, 28, 29, 30):
        cmul(k, Bc, Bc, E256, T); put(Bc, [r])
    for s in range(8): k(f"ds_read_b128 {vr(PF+4*s,4)}, v5 offset:{32*s}")
    while sp: S()
    for s in range(8):
        k(f"s_waitcnt lgkmcnt({7-s})")
        k(f"v_mfma_f32_32x32x16_bf16 {vr(ACC,16)}, {vr(PF+4*s,4)}, {vr(QF+4*s,4)}, {vr(ACC,16) if s else 0}")

def param_loads(k, vm):
    k("s_lshl_b32 s22, s26, 8\nv_lshl_add_u32 v2, v1, 2, s22\ns_lshr_b32 s23, s26, 1\ns_lshl_b32 s23, s23, 2")
    ptr = [52, 54, 56, 58, 72, 74]
    for i in range(6): vm(f"global_load_dword v{200+i}, v2, s[{ptr[i]}:{ptr[i]+1}]", "par")
    k("s_load_dword s28, s[76:77], s23")
def dt_calc(k):
    k("s_and_b32 s23, s26, 1\ns_lshl_b32 s23, s23, 4\ns_lshr_b32 s28, s28, s23\ns_lshl_b32 s28, s28, 16")
    k(f"v_mov_b32 v6, s28\nv_mul_f32 v6, {hexf(math.log2(math.e))}, v6\nv_exp_f32 v6, v6\ns_nop 0\nv_cvt_pk_bf16_f32 v6, v6, v6\nv_and_b32 v6, 0xffff0000, v6")
def frag_addr(k, base):
    k(f"v_and_b32 v3, 31, v1\nv_lshrrev_b32 v4, 5, v1\nv_mul_u32_u24 v5, {RP}, v3\nv_lshl_add_u32 v5, v4, 4, v5\nv_add_u32 v5, {base}, v5")
PTRS = f"s_load_dwordx8 s[52:59], s[0:1], {ARG['A_re']}\ns_load_dwordx4 s[72:75], s[0:1], {ARG['C_re']}\ns_load_dwordx4 s[76:79], s[0:1], {ARG['log_dt']}"

def zcheck(k, name):
    k(f"s_mov_b32 s48, 0\n{name}:\nbuffer_load_dword v9, off, s[36:39], 0 offset:8 sc1\ns_add_u32 s48, s48, 1\ns_waitcnt vmcnt(0)\nv_readfirstlane_b32 s49, v9")
    k(f"s_cmp_lg_u32 s49, 0\ns_cbranch_scc1 {name}_OK\ns_sleep 2\ns_cmp_lt_u32 s48, {SPIN}\ns_cbranch_scc1 {name}\n{name}_OK:")

def conv_L(k, diag, NG0=4, SPOS=(3, 6, 9, 12), GPOS=None):
    vm = VM(k)
    k(f"s_load_dwordx2 s[6:7], s[0:1], {ARG['x']}\ns_load_dwordx2 s[34:35], s[0:1], {ARG['dbg']}")
    k(PTRS)
    k("s_mul_i32 s33, s20, 20\ns_add_u32 s33, s33, s21\ns_lshl_b32 s26, s33, 2\ns_add_u32 s26, s26, s25")
    k("v_mul_u32_u24 v62, 2560, v0\nv_lshlrev_b32 v63, 4, v0\ns_lshl_b32 s27, s33, 3")
    k(f"v_mov_b32 v12, 0\nv_mov_b32 v13, 0\ns_lshl_b32 s29, s25, 2\ns_add_u32 s29, s29, {FLG}\nv_mov_b32 v60, s29\nv_mov_b32 v19, {FLG}\nds_write_b32 v60, v12\nds_write_b64 v19, v[12:13] offset:16\nds_write_b32 v19, v12 offset:24")
    k("s_waitcnt lgkmcnt(0)")
    param_loads(k, vm)
    k("s_load_dwordx2 s[30:31], s[78:79], s27")
    k.srd(8, 6, 2621440)
    k("s_barrier")
    XS = 128; GR = 144
    for p in range(4):
        k(f"s_add_u32 s{64+p}, s21, {p}\ns_and_b32 s{64+p}, s{64+p}, 3\ns_mul_i32 s{68+p}, s{64+p}, {512*1280}\ns_add_u32 s{68+p}, s{68+p}, s27")
    def xl(i): vm(f"buffer_load_dwordx2 {vr(XS+2*i,2)}, v62, s[8:11], s{68+(i>>1)} offen offset:{(i&1)*1280}", "xs")
    for i in range(NG0): xl(i)
    if diag:
        stamp_setup(k); vm.stamp(0)
    k.srd(36, 34, 256)
    srd_off(k, 12, WS_ST, 16384)
    k(f"s_mul_i32 s29, s25, 8704\ns_add_u32 s29, s29, {SB}\nv_lshl_add_u32 v18, v1, 2, s29")
    frag_addr(k, "s29")
    k("s_waitcnt lgkmcnt(0)")
    dt_calc(k)
    vm.wait("par")
    if diag: vm.stamp(1)
    def gload(i): return f"s_lshl_b32 s27, s{64+i}, 12\ns_nop 0\nbuffer_load_dwordx4 {vr(GR+4*i,4)}, v63, s[12:15], s27 offen sc1"
    def gall():
        vm("buffer_load_dword v61, off, s[36:39], 0 sc1", "g")
        for i in range(4): vm(gload(i), "g")
    sp = [(lambda: None)] * 17
    for n, i in enumerate(range(NG0, 8)): sp[SPOS[n]] = (lambda i=i: xl(i))
    if GPOS is not None: sp[GPOS] = gall
    kgen_pass(k, True, sp[:13], "v18")
    k("v_lshlrev_b32 v7, 4, v1\nv_add_u32 v7, s29, v7\nv_mov_b32 v8, 1\ns_mov_b32 s47, 0x0c0c0400\ns_mov_b32 s49, 0x04000c0c\ns_nop 7\ns_nop 1")
    for i in range(4): k(f"ds_write_b128 v7, {vr(44+4*i,4)} offset:{1024*i}")
    k("ds_write_b32 v60, v8")
    if diag: vm.stamp(3)
    for f in sp[13:]: f()
    if GPOS is None: gall()
    XF = 160; UF = 64; UP = 96
    vm.wait("xs")
    if diag: vm.stamp(2)
    for t in range(8):
        for h in range(2): k(f"v_lshlrev_b32 v{XF+4*t+2*h}, 16, v{XS+2*t+h}\nv_and_b32 v{XF+4*t+2*h+1}, 0xffff0000, v{XS+2*t+h}")
    k(f"v_lshlrev_b32 v7, 2, v0\nv_add_u32 v7, {UA+480}, v7")
    for p in range(4): k(f"s_lshl_b32 s27, s{64+p}, 10\nv_add_u32 v{20+p}, s27, v7")
    k("s_mov_b32 s48, 0\ns_waitcnt vmcnt(0)")
    k("S_GP:")
    for i in range(4):
        g = GR + 4 * i
        k(f"v_perm_b32 v10, v{g+1}, v{g}, s47\nv_perm_b32 v11, v{g+3}, v{g+2}, s49\nv_or_b32 v10, v10, v11")
        k(f"v_xor_b32 v{12 if i == 0 else 13}, v10, v61")
        if i: k("v_or_b32 v12, v12, v13")
    k("v_not_b32 v13, v61\nv_and_or_b32 v12, v13, 1, v12")
    k("v_cmp_ne_u32 vcc, 0, v12\ns_add_u32 s48, s48, 1\ns_cbranch_vccz S_GOK")
    k("buffer_load_dword v61, off, s[36:39], 0 sc1")
    for i in range(4): k(gload(i))
    k(f"s_cmp_lt_u32 s48, {SPIN}\ns_waitcnt vmcnt(0)\ns_cbranch_scc1 S_GP")
    k("S_GOK:")
    if diag: stamp(k, 4)
    for p in range(4):
        for t in (2 * p, 2 * p + 1):
            k(f"v_and_b32 v{GR+2*t}, 0xffffff00, v{GR+2*t}\nv_and_b32 v{GR+2*t+1}, 0xffffff00, v{GR+2*t+1}")
            for h in range(2):
                k(f"v_pk_fma_f32 {vr(UF+4*t+2*h,2)}, {vr(XF+4*t+2*h,2)}, {vr(GR+2*t,2)}, {vr(GR+2*t,2)} op_sel:[0,0,1] op_sel_hi:[1,0,1]")
        for c in range(4):
            k(f"v_cvt_pk_bf16_f32 v{UP+4*c+p}, v{UF+8*p+c}, v{UF+8*p+4+c}\nds_write_b32 v{20+p}, v{UP+4*c+p} offset:{c*U_P}")
    k("s_waitcnt lgkmcnt(0)")
    if diag: stamp(k, 5)
    k("s_barrier")
    k(f"v_lshlrev_b32 v7, 3, v0\nv_add_u32 v7, {ZA}, v7")
    for p in range(4): k(f"s_lshl_b32 s27, s{64+p}, 11\nv_add_u32 v{20+p}, s27, v7")
    k("s_lshl_b32 s60, s30, 16\ns_and_b32 s61, s30, 0xffff0000\ns_lshl_b32 s62, s31, 16\ns_and_b32 s63, s31, 0xffff0000")
    for c in range(4):
        for p in range(4):
            k(f"v_lshlrev_b32 v16, 16, v{UP+4*c+p}\nv_and_b32 v17, 0xffff0000, v{UP+4*c+p}")
            k(f"v_fma_f32 v{24+2*p}, v16, s{60+c}, v{XF+8*p+c}\nv_fma_f32 v{25+2*p}, v17, s{60+c}, v{XF+8*p+4+c}")
            k(f"ds_write_b64 v{20+p}, {vr(24+2*p,2)} offset:{c*8192}")
    zcheck(k, "S_ZC")
    k("s_mov_b64 exec, 1\nds_add_u32 v19, v8 offset:16\ns_mov_b64 exec, -1\ns_branch M_FFN_L")

def job_wg(k, diag, THR=2, NTH=4):
    vm = VM(k)
    k(f"s_load_dwordx2 s[6:7], s[0:1], {ARG['x']}\ns_load_dwordx2 s[34:35], s[0:1], {ARG['dbg']}\ns_load_dwordx2 s[56:57], s[0:1], {ARG['Wd']}")
    k("s_sub_u32 s33, s2, 160\ns_mul_i32 s26, s24, 96\ns_add_u32 s26, s26, s33\ns_mul_i32 s27, s26, 2560")
    k(f"s_add_u32 s28, s27, {768*2560}")
    k("v_lshrrev_b32 v7, 5, v1\nv_and_b32 v3, 31, v1\nv_lshlrev_b32 v4, 4, v3\nv_mul_u32_u24 v5, 1280, v7\nv_add_u32 v5, v5, v4")
    k("v_cmp_gt_u32 vcc, 16, v3\nv_add_u32 v8, 1024, v5\nv_mov_b32 v9, 0x7fffffff\ns_nop 0\nv_cndmask_b32 v8, v9, v8, vcc")
    k("s_cmp_ge_u32 s33, 27\ns_cselect_b32 s29, 1, 0\ns_lshl_b32 s23, s29, 3")
    k(f"s_add_u32 s23, s23, {ARG['Wg']}\ns_load_dwordx2 s[58:59], s[0:1], s23")
    k("s_waitcnt lgkmcnt(0)")
    k.srd(8, 6, 2621440)
    for b, so in ((16, "s27"), (28, "s28")):
        vm(f"buffer_load_dwordx4 {vr(b,4)}, v5, s[8:11], {so} offen\nbuffer_load_dwordx4 {vr(b+4,4)}, v5, s[8:11], {so} offen offset:512\nbuffer_load_dwordx4 {vr(b+8,4)}, v8, s[8:11], {so} offen", "x")
    k.srd(36, 34, 256)
    srd_off(k, 16, WS_CNT, NCNT * 256)
    k("s_cmp_eq_u32 s26, 672\ns_cselect_b32 s18, s18, 0\nv_lshlrev_b32 v2, 8, v1\nv_mov_b32 v48, 0\nv_mov_b32 v49, 0\nv_mov_b32 v50, 0\nv_mov_b32 v51, 0")
    vm("buffer_store_dwordx4 v[48:51], v2, s[16:19], 0 offen sc0 sc1", "z")
    if diag:
        stamp_setup(k); vm.stamp(0)
    srd_off(k, 12, WS_ST, 16384)
    k("v_mov_b32 v14, 0x3f803f80\ns_mov_b32 s46, 0")
    vm.wait("x")
    if diag: vm.stamp(1)
    k("buffer_load_dword v61, off, s[36:39], 0 sc1")
    k("J_ST:")
    k("v_mov_b32 v12, 0\nv_mov_b32 v13, 0")
    for r in range(16, 28):
        k(f"v_dot2c_f32_bf16 v12, v{r}, v14\nv_dot2c_f32_bf16 v13, v{r}, v{r}")
    k("s_nop 2")
    for sh in (1, 2, 4, 8):
        k(f"v_add_f32_dpp v12, v12, v12 row_ror:{sh} row_mask:0xf bank_mask:0xf\nv_add_f32_dpp v13, v13, v13 row_ror:{sh} row_mask:0xf bank_mask:0xf\ns_nop 0")
    k("v_mov_b32 v40, v12\nv_mov_b32 v41, v13\ns_nop 1\nv_permlane16_swap_b32 v40, v12\nv_permlane16_swap_b32 v41, v13\ns_nop 1")
    k("v_add_f32 v12, v12, v40\nv_add_f32 v13, v13, v41")
    k(f"v_mul_f32 v12, {hexf(1.0/640)}, v12\nv_mul_f32 v13, {hexf(1.0/640)}, v13\nv_fma_f32 v13, -v12, v12, v13")
    k(f"v_max_f32 v13, 0, v13\nv_add_f32 v13, {hexf(1e-5)}, v13\nv_rsq_f32 v40, v13\ns_nop 0")
    k("v_mul_f32 v41, -v12, v40\nv_mov_b32 v42, v40\nv_mov_b32 v43, v41\ns_nop 1")
    k("v_permlane32_swap_b32 v40, v42\nv_permlane32_swap_b32 v41, v43")
    k("s_cmp_lg_u32 s46, 0\ns_cbranch_scc1 J_NOK\ns_mov_b32 s48, 0\ns_waitcnt vmcnt(0)")
    k("J_NP:\nv_readfirstlane_b32 s46, v61\ns_add_u32 s48, s48, 1\ns_cmp_lg_u32 s46, 0\ns_cbranch_scc1 J_NOK")
    k(f"buffer_load_dword v61, off, s[36:39], 0 sc1\ns_cmp_lt_u32 s48, {SPIN}\ns_waitcnt vmcnt(0)\ns_cbranch_scc1 J_NP\nJ_NOK:")
    for i in range(4):
        k(f"s_mov_b32 s47, {0x07060500 + i}\nv_perm_b32 v{44+i}, v{40+i}, v61, s47")
    k("s_lshl_b32 s27, s26, 4\ns_mov_b64 exec, 1\nbuffer_store_dwordx4 v[44:47], off, s[12:15], s27 sc1\ns_mov_b64 exec, -1")
    k("s_cmp_ge_u32 s26, 256\ns_cbranch_scc1 J_ST2\ns_add_u32 s26, s26, 768")
    for r in range(12): k(f"v_mov_b32 v{16+r}, v{28+r}")
    k("s_branch J_ST\nJ_ST2:")
    if diag: stamp(k, 2)
    k("s_cmp_lg_u32 s26, 672\ns_cbranch_scc1 J_NZ\nv_mov_b32 v4, 1\ns_mov_b64 exec, 1\nbuffer_store_dword v4, off, s[36:39], 0 offset:8 sc0 sc1\ns_mov_b64 exec, -1\nJ_NZ:")
    k("s_cmp_ge_u32 s33, 54\ns_cbranch_scc1 J_WD")
    vm = VM(k)
    k("s_mul_i32 s23, s29, 27\ns_sub_u32 s23, s33, s23")
    k.srd(16, 58, 640 * 3456)
    k("v_lshrrev_b32 v2, 3, v1\nv_mul_u32_u24 v5, 3456, v2\nv_and_b32 v3, 7, v1\nv_lshl_add_u32 v5, v3, 4, v5")
    k(f"s_lshl_b32 s26, s23, 7\ns_mul_i32 s27, s24, {8*3456}\ns_add_u32 s26, s26, s27")
    nd = [0]
    def ld():
        vm(f"buffer_load_dwordx4 {vr(72+4*nd[0],4)}, v5, s[16:19], s26 offen\ns_add_u32 s26, s26, {64*3456}", nd[0]); nd[0] += 1
    for _ in range(min(THR, 10)): ld()
    for r in range(16, 24): k(f"v_mov_b32 v{r}, 0")
    for i in range(10):
        vm.wait(i)
        if nd[0] < 10: ld()
        if nd[0] > NTH:
            while nd[0] < 10: ld()
        for j in range(4):
            w = 72 + 4 * i + j
            k(f"v_lshlrev_b32 v24, 16, v{w}\nv_and_b32 v25, 0xffff0000, v{w}\nv_pk_add_f32 {vr(16+2*j,2)}, {vr(16+2*j,2)}, v[24:25]")
    if diag: stamp(k, 3)
    k(f"s_lshl_b32 s27, s24, 11\ns_add_u32 s27, s27, {JOBRED}\nv_lshlrev_b32 v10, 5, v1\nv_add_u32 v10, s27, v10\nds_write_b128 v10, v[16:19]\nds_write_b128 v10, v[20:23] offset:16")
    zcheck(k, "J_ZC")
    k("s_waitcnt lgkmcnt(0)\ns_barrier")
    k("s_cmp_lg_u32 s24, 7\ns_cbranch_scc1 J_OUT")
    srd_off(k, 12, WS_CS, 2 * 1792 * 4)
    k(f"v_lshlrev_b32 v10, 2, v1\nv_add_u32 v11, {JOBRED}, v10\nv_mov_b32 v16, 0\nv_mov_b32 v17, 0")
    for g in range(4):
        for s_ in range(8): k(f"ds_read2st64_b32 {vr(32+2*s_,2)}, v11 offset0:{16*g+2*s_} offset1:{16*g+2*s_+1}")
        k("s_waitcnt lgkmcnt(0)")
        for s_ in range(8): k(f"v_pk_add_f32 v[16:17], v[16:17], {vr(32+2*s_,2)}")
    k(f"v_add_f32 v16, v16, v17\ns_mul_i32 s30, s29, {1792*4}\ns_lshl_b32 s27, s23, 8\ns_add_u32 s30, s30, s27\nbuffer_store_dword v16, v10, s[12:15], s30 offen sc1")
    k("J_ARR:")
    k(f"s_mov_b32 s47, {WS_CNT+C_W*256}\ns_mov_b32 s49, 1\ns_waitcnt vmcnt(0)\ns_atomic_add s49, s[4:5], s47 glc")
    srd_off(k, 12, WS_CNT + G_W * 256, 4)
    k("v_mov_b32 v16, 1\nv_lshlrev_b32 v10, 2, v1\ns_waitcnt lgkmcnt(0)\ns_cmp_eq_u32 s49, 95\ns_cselect_b32 s14, s14, 0\nbuffer_store_dword v16, v10, s[12:15], 0 offen sc0 sc1")
    if diag: stamp(k, 4)
    k("s_branch J_OUT")
    k("J_WD:")
    vm = VM(k)
    k.srd(40, 56, 1728 * 1280)
    k(f"s_sub_u32 s22, 95, s33\ns_mul_i32 s31, s22, 40960\ns_mul_i32 s27, s24, 160\ns_add_u32 s31, s31, s27\ns_add_u32 s28, s31, {42*40960}\ns_mul_i32 s27, s24, 5120\ns_mov_b32 s30, 6554")
    for j in range(5):
        k(f"v_add_u32 v2, {64*j}, v1\nv_mul_lo_u32 v3, v2, s30\nv_lshrrev_b32 v3, 16, v3\nv_mul_u32_u24 v4, 10, v3\nv_sub_u32 v4, v2, v4\nv_mul_u32_u24 v3, 1280, v3\nv_lshl_add_u32 v{40+j}, v4, 4, v3")
        vm(f"s_add_u32 m0, s27, {1024*j}\ns_nop 0\nbuffer_load_dwordx4 v{40+j}, s[40:43], s31 offen lds" + (f"\ns_waitcnt vmcnt({THR-1})" if j < NTH else ""), 0)
    for j in range(5):
        vm(f"s_add_u32 m0, s27, {40960+1024*j}\ns_nop 0\nbuffer_load_dwordx4 v{40+j}, s[40:43], s28 offen lds", 1)
    k(f"s_mul_i32 s26, s24, {WD_DT}\ns_add_u32 s26, s26, {WS_WD}")
    srd_off(k, 12, "s26", WD_DT)
    k("v_lshrrev_b32 v2, 2, v1\nv_mul_u32_u24 v2, 160, v2\nv_and_b32 v3, 3, v1\nv_mul_u32_u24 v3, 40, v3\nv_add3_u32 v4, v2, v3, s27")
    k("s_mul_i32 s31, s22, 5120\nv_lshlrev_b32 v6, 4, v1\nv_add_u32 v7, 4096, v6")
    vm.wait(1)
    for rep in range(2):
        b = 48 + 20 * rep
        for i in range(5):
            k(f"ds_read_b64_tr_b16 {vr(b+4*i,2)}, v4 offset:{40960*rep+8*i}\nds_read_b64_tr_b16 {vr(b+2+4*i,2)}, v4 offset:{40960*rep+8*i+2560}")
        for i in range(5):
            k(f"s_waitcnt lgkmcnt({2*(4-i)})")
            vm(f"buffer_store_dwordx4 {vr(b+4*i,4)}, " + (f"v6, s[12:15], s31 offen offset:{i*1024} sc1" if i < 4 else "v7, s[12:15], s31 offen sc1"), "ws")
        k(f"s_add_u32 s31, s31, {42*5120}")
    if diag: stamp(k, 3)
    zcheck(k, "J_ZD")
    k("s_barrier\ns_cmp_eq_u32 s24, 7\ns_cbranch_scc1 J_ARR")
    k("J_OUT:\ns_cmp_ge_u32 s24, 4\ns_cbranch_scc1 M_FFN_C\ns_branch M_FFN_L")

def conv_C(k, diag):
    vm = VM(k)
    k(PTRS)
    k("s_cmp_lg_u32 s2, 0\ns_cbranch_scc1 S_C_NN\ns_cmp_lg_u32 s24, 4\ns_cbranch_scc1 S_C_NN")
    k(f"s_load_dwordx2 s[34:35], s[0:1], {ARG['dbg']}\ns_memrealtime s[46:47]\ns_waitcnt lgkmcnt(0)\ns_or_b32 s48, s46, 1\nv_mov_b32 v8, s48\nv_mov_b32 v9, 0")
    k("s_mov_b64 exec, 1\nglobal_store_dword v9, v8, s[34:35] sc0 sc1\ns_mov_b64 exec, -1")
    k("S_C_NN:")
    k("s_mul_i32 s33, s20, 20\ns_add_u32 s33, s33, s21\ns_lshl_b32 s26, s33, 2\ns_add_u32 s26, s26, s25")
    k("s_waitcnt lgkmcnt(0)")
    param_loads(k, vm)
    k("s_barrier")
    if diag:
        stamp_setup(k); vm.stamp(0)
    k(f"s_mul_i32 s30, s25, {KC_CH}\ns_mov_b32 m0, s30")
    frag_addr(k, "s30")
    k(f"s_mul_i32 s31, s25, {U_P}\ns_add_u32 s31, s31, {UA}\nv_lshlrev_b32 v7, 4, v1\nv_min_u32 v8, 464, v7\nv_add_u32 v8, s31, v8")
    k("v_mov_b32 v44, 0\nv_mov_b32 v45, 0\nv_mov_b32 v46, 0\nv_mov_b32 v47, 0\nds_write_b128 v8, v[44:47]")
    srd_off(k, 16, WS_HT, 2621440)
    k("v_lshlrev_b32 v9, 4, v3\nv_lshlrev_b32 v10, 3, v4\nv_add_u32 v10, v9, v10\ns_add_u32 s27, s30, " + str(4088 - 1536) + "\nv_sub_u32 v210, s27, v10")
    k("v_lshlrev_b32 v11, 10, v4\nv_add_u32 v11, v9, v11\ns_add_u32 s27, s30, " + str(2040 - 512) + "\nv_sub_u32 v211, s27, v11")
    k("v_and_b32 v12, 1, v3\nv_lshlrev_b32 v12, 1, v12\nv_add_u32 v12, v211, v12\nv_subrev_u32 v212, 2, v12")
    k(f"v_cmp_eq_u32 vcc, 32, v1\nv_mov_b32 v13, s30\nv_add_u32 v14, {3*KC_P}, v13\ns_nop 0\nv_cndmask_b32 v213, v14, v13, vcc")
    k(f"v_lshrrev_b32 v14, 2, v1\nv_and_b32 v14, 3, v14\nv_mul_u32_u24 v14, {KC_P}, v14\nv_and_b32 v15, 3, v1\nv_lshl_add_u32 v14, v15, 3, v14\nv_add_u32 v214, s30, v14")
    k("v_add_u32 v8, s30, v7")
    k(f"s_lshl_b32 s27, s25, 2\ns_add_u32 s27, s27, {FLG}\nv_mov_b32 v60, s27\ns_mul_i32 s27, s25, 8704\ns_add_u32 s27, s27, {SB}\nv_add_u32 v61, s27, v7")
    k("v_and_b32 v13, 15, v1\nv_lshrrev_b32 v9, 4, v1")
    k(f"v_sub_u32 v10, 3, v13\nv_and_b32 v10, 3, v10\nv_mul_u32_u24 v10, {KC_P}, v10")
    k("v_lshrrev_b32 v11, 2, v13\nv_lshlrev_b32 v11, 3, v11\nv_sub_u32 v10, v10, v11\nv_lshlrev_b32 v11, 4, v9\nv_sub_u32 v10, v10, v11")
    k(f"s_add_u32 s27, s30, {4104-3584}\nv_add_u32 v226, s27, v10")
    k(f"v_lshlrev_b32 v10, 5, v13\nv_sub_u32 v10, v10, v11\ns_add_u32 s27, s31, 496\nv_add_u32 v227, s27, v10")
    k("v_lshrrev_b32 v12, 3, v13\nv_mul_u32_u24 v12, 0x28000, v12\nv_and_b32 v11, 7, v13\nv_lshl_add_u32 v12, v11, 5, v12")
    k("v_lshrrev_b32 v11, 1, v9\nv_lshl_add_u32 v12, v11, 4, v12\nv_and_b32 v11, 1, v9\nv_mul_u32_u24 v11, 0x50000, v11\nv_add_u32 v228, v12, v11")
    k(f"v_lshlrev_b32 v10, 6, v13\nv_lshl_add_u32 v10, v9, 4, v10\ns_lshl_b32 s27, s25, 13\ns_add_u32 s27, s27, {ZA}\nv_add_u32 v229, s27, v10\ns_lshl_b32 s29, s26, 8\nv_mov_b32 v230, {FLG}")
    k("s_waitcnt lgkmcnt(0)")
    dt_calc(k)
    vm.wait("par")
    if diag: vm.stamp(1)
    kgen_pass(k, False)
    ACC = 44
    k("v_mov_b32 v16, 0\nv_mov_b32 v17, 0\nv_cmp_eq_u32 vcc, 0, v4\nds_write_b64 v214, v[16:17] offset:4096")
    if diag: stamp(k, 6)
    k("S_C_PW:\nds_read_b32 v62, v60\ns_waitcnt lgkmcnt(0)\nv_readfirstlane_b32 s27, v62\ns_cmp_lg_u32 s27, 0\ns_cbranch_scc1 S_C_PG\ns_sleep 1\ns_branch S_C_PW\nS_C_PG:")
    for i in range(4): k(f"ds_read_b128 {vr(64+4*i,4)}, v61 offset:{1024*i}")
    k("s_waitcnt lgkmcnt(0)")
    for i in range(8): k(f"v_pk_add_f32 {vr(ACC+2*i,2)}, {vr(ACC+2*i,2)}, {vr(64+2*i,2)}")
    a = lambda i: f"v{ACC+i}"
    for cp in range(2):
        k(f"v_cvt_pk_bf16_f32 v{20+2*cp}, {a(12+cp)}, {a(12+cp)}\nv_mov_b32 v{21+2*cp}, v{20+2*cp}")
        k(f"ds_write_b64 v211, {vr(20+2*cp,2)} offset:{512-512*cp}\nds_write_b64 v211, {vr(20+2*cp,2)} offset:{512-512*cp+8}")
    for cp in range(2): k(f"ds_write_b16 v212, v{20+2*cp} offset:{512-512*cp}")
    k(f"v_cvt_pk_bf16_f32 v24, {a(14)}, {a(14)}\nv_mov_b32 v25, v24\nds_write_b64 v213, v[24:25]")
    for c in range(2):
        k(f"v_cndmask_b32 v26, {a(9+2*c)}, {a(8+2*c)}, vcc")
        k(f"v_cvt_pk_bf16_f32 v{28+2*c}, {a(9+2*c)}, v26\nv_cvt_pk_bf16_f32 v{29+2*c}, {a(8+2*c)}, {a(8+2*c)}")
        k(f"ds_write_b64 v210, {vr(28+2*c,2)} offset:{1536-2*(512+256*c)}")
    k(f"v_cvt_pk_bf16_f32 v32, {a(6)}, {a(5)}\nv_cvt_pk_bf16_f32 v33, {a(4)}, {a(4)}\nds_write_b64 v210, v[32:33] offset:{1536-512}")
    k(f"v_cvt_pk_bf16_f32 v34, {a(3)}, {a(2)}\nv_cvt_pk_bf16_f32 v35, {a(1)}, {a(0)}\nds_write_b64 v210, v[34:35] offset:1536")
    for i in range(4):
        k(f"ds_read_b128 {vr(64+8*i,4)}, v8 offset:{1024*i}\nds_read_b64 {vr(68+8*i,2)}, v8 offset:{1024*i+16}")
    CA = 16; KF = [48, 112]; UF = [80, 144]
    vKa, vUa = 226, 227
    for i in range(4):
        b = 64 + 8 * i; o = 112 + 12 * i
        k(f"s_waitcnt lgkmcnt({2*(3-i)+3*i})")
        for j in range(4): k(f"v_alignbit_b32 v{o+j}, v{b+j+1}, v{b+j}, 16")
        k(f"ds_write_b128 v8, {vr(o,4)} offset:{KC_P+1024*i}")
        for j in range(4): k(f"v_mov_b32 v{o+4+j}, v{b+j+1}")
        k(f"ds_write_b128 v8, {vr(o+4,4)} offset:{2*KC_P+1024*i}")
        for j in range(4): k(f"v_alignbit_b32 v{o+8+j}, v{b+j+2}, v{b+j+1}, 16")
        k(f"ds_write_b128 v8, {vr(o+8,4)} offset:{3*KC_P+1024*i}")
    def kreads(s): return [x for i in range(8) for x in (f"ds_read_b64 {vr(KF[s]+4*i,2)}, v{vKa} offset:{(7-i)*512}", f"ds_read_b64 {vr(KF[s]+4*i+2,2)}, v{vKa} offset:{(7-i)*512+8}")]
    def ureads(s): return [f"ds_read_b128 {vr(UF[s]+4*i,4)}, v{vUa} offset:{512*i}" for i in range(8)]
    def reads(s):
        a_, b_ = kreads(s), ureads(s)
        r = []
        for i in range(8): r += [b_[i], a_[2*i], a_[2*i+1]]
        r.append(f"v_subrev_u32 v{vKa}, 64, v{vKa}\nv_subrev_u32 v{vUa}, 64, v{vUa}")
        return r
    def residue(ms, rd, tail=None):
        rd = list(rd)
        pairs = [(sg, be) for sg in range(8) for be in range(8 - sg)]
        for n, (sg, be) in enumerate(pairs):
            a = CA + 4 * (sg + be)
            if n == 35 and tail: k(tail)
            k(f"v_mfma_f32_16x16x32_bf16 {vr(a,4)}, {vr(KF[ms]+4*sg,4)}, {vr(UF[ms]+4*be,4)}, {vr(a,4)}")
            if rd: k(rd.pop(0))
        assert not rd
    for r in kreads(0): k(r)
    for r in range(CA, CA + 32): k(f"v_mov_b32 v{r}, 0")
    if diag: stamp(k, 2)
    k("s_setprio 3\ns_barrier")
    if diag: stamp(k, 3)
    for r in ureads(0): k(r)
    k(f"v_subrev_u32 v{vKa}, 64, v{vKa}\nv_subrev_u32 v{vUa}, 64, v{vUa}")
    k("s_mov_b32 s36, 0\ns_waitcnt lgkmcnt(0)")
    k(".p2align 3\nS_LOOP:")
    residue(0, reads(1) + ["ds_read_b32 v14, v230 offset:16"], "s_add_u32 s36, s36, 1\ns_waitcnt lgkmcnt(0)\nv_readfirstlane_b32 s27, v14\ns_cmp_lt_u32 s36, 4")
    k("s_cbranch_scc0 S_TAIL\ns_nop 0")
    residue(1, reads(0), "s_waitcnt lgkmcnt(0)\ns_nop 0")
    k("s_branch S_LOOP\ns_nop 0")
    k("S_TAIL:\ns_cmp_ge_u32 s27, 4\ns_cbranch_scc1 S_ZG")
    k("S_ZW:\nds_read_b32 v14, v230 offset:16\ns_waitcnt lgkmcnt(0)\nv_readfirstlane_b32 s27, v14\ns_cmp_lt_u32 s27, 4\ns_cbranch_scc1 S_ZW\n.p2align 3\nS_ZG:")
    residue(1, [f"ds_read_b128 {vr(KF[0]+4*b,4)}, v229 offset:{1024*b}" for b in range(8)])
    if diag: stamp(k, 4)
    k("s_waitcnt lgkmcnt(0)")
    for bp in range(4):
        o = UF[0] + 4 * bp
        for bb in range(2):
            b = 2 * bp + bb; a = CA + 4 * b
            for hx in range(2):
                k(f"v_pk_add_f32 {vr(a+2*hx,2)}, {vr(a+2*hx,2)}, {vr(KF[0]+4*b+2*hx,2)}")
                k(f"v_cvt_pk_bf16_f32 v{o+2*bb+hx}, v{a+2*hx}, v{a+2*hx+1}")
        k("s_nop 1")
        k(f"v_permlane16_swap_b32 v{o}, v{o+2}\nv_permlane16_swap_b32 v{o+1}, v{o+3}")
        k(f"buffer_store_dwordx4 {vr(o,4)}, v228, s[16:19], s29 offen sc1\ns_add_u32 s29, s29, 0xa0000")
    k("s_waitcnt vmcnt(0)")
    if diag: stamp(k, 5)
    k("v_mov_b32 v14, 1\ns_mov_b64 exec, 1\nds_add_rtn_u32 v15, v230, v14 offset:20\ns_waitcnt lgkmcnt(0)\nv_readfirstlane_b32 s27, v15\ns_mov_b64 exec, -1")
    k("s_cmp_lg_u32 s27, 3\ns_cbranch_scc1 M_FFN_C")
    k(f"s_and_b32 s46, s33, 3\ns_lshl_b32 s47, s46, 8\ns_add_u32 s47, s47, {WS_CNT+C_S2*256}\ns_mov_b32 s49, 1\ns_atomic_add s49, s[4:5], s47 glc")
    srd_off(k, 16, WS_CNT + G_S2 * 256, 8 * 256)
    k("v_lshlrev_b32 v15, 8, v1\ns_lshl_b32 s46, s46, 2\ns_waitcnt lgkmcnt(0)\ns_cmp_lg_u32 s49, 39\ns_cbranch_scc1 M_FFN_C")
    k("buffer_store_dword v14, v15, s[16:19], s46 offen sc0 sc1\ns_branch M_FFN_C")
```

```python
from m8_common import *
import m8_ffn, m8_ssm
HDR = open("cdna_kernels/" + KN + ".s.ref").read().split("; Override launch")[0]
def gen_m8(diag=False, THR=2, NTH=4, **kw):
    k = Kern(KN + "_kernel", 256, 512, m8_ffn.M8_LDS, vgpr=256, sgpr=100)
    k("s_cmp_ge_u32 s2, 256\ns_cbranch_scc1 M_END")
    if diag: stamp(k, 15)
    k(f"s_load_dwordx2 s[4:5], s[0:1], {ARG['ws']}")
    k.code_prefetch("M_END", vdst=255, stride=7)
    k("v_readfirstlane_b32 s24, v0\nv_and_b32 v1, 63, v0\ns_lshr_b32 s24, s24, 6\ns_and_b32 s25, s24, 3\ns_and_b32 s20, s2, 7\ns_lshr_b32 s21, s2, 3")
    k("s_cmp_ge_u32 s2, 160\ns_cbranch_scc1 M_J\ns_cmp_ge_u32 s24, 4\ns_cbranch_scc1 M_C")
    m8_ssm.conv_L(k, diag, **{a: b for a, b in kw.items() if a in ("NG0", "SPOS", "GPOS")})
    k("M_C:")
    m8_ssm.conv_C(k, diag)
    k("M_J:")
    m8_ssm.job_wg(k, diag, THR, NTH)
    k("M_FFN_L:")
    m8_ffn.ffn_L(k, diag, False, **{a: b for a, b in kw.items() if a in ("AX", "IW", "IM", "X", "H0", "TA")})
    k("M_FFN_C:")
    m8_ffn.ffn_C(k, diag, False, **{a: b for a, b in kw.items() if a in ("N1", "X", "H0", "P2")})
    k("M_END:\ns_endpgm")
    return k
def single(k):
    o = HDR + f"; @launch grid=({k.grid},1,1) block=({k.block},1,1) lds={k.lds}\n"
    o += '.amdgcn_target "amdgcn-amd-amdhsa--gfx950"\n.text\n' + k.text() + '.section .rodata,"a"\n.p2align 6\n' + k.desc()
    return o
if __name__ == "__main__":
    open("m8.s", "w").write(single(gen_m8()))
    open("m8_diag.s", "w").write(single(gen_m8(diag=True)))
    V = dict(a=dict(), b=dict(NTH=3), c=dict(THR=1, NTH=2), d=dict(AX=0.5), e=dict(AX=1.5))
    for n, kw in V.items(): open(f"m8_d{n}.s", "w").write(single(gen_m8(diag=True, **kw)))
```

```python
import sys
import m8_common, gen_m8, m8_ffn
from m8_common import *
def mk(wg, wave, slot):
    def flush(k):
        L = k.lab("leak")
        k(f"s_lshl_b32 s92, s2, 3\ns_add_u32 s92, s92, s24\ns_cmp_lg_u32 s92, {wg*8+wave}\ns_cbranch_scc1 {L}_e")
        k(f"v_readlane_b32 s88, v254, 30\nv_readlane_b32 s89, v254, {2*slot}\nv_readlane_b32 s90, v254, 30\ns_nop 3\ns_sub_u32 s88, s89, s88\ns_add_u32 s88, s88, 3000")
        k(f"{L}:\ns_memrealtime s[94:95]\ns_waitcnt lgkmcnt(0)\ns_sub_u32 s91, s94, s90\ns_cmp_lt_u32 s91, s88\ns_cbranch_scc1 {L}\n{L}_e:")
    return flush
S = dict(zero=(37,4,15), par=(37,4,1), xs=(37,0,2), ok=(37,0,4), K=(37,4,2), cgo=(37,4,3), drn=(37,4,5), s2=(37,0,8), lend=(37,4,9), go=(37,4,11), end=(37,4,14), jx=(200,0,1), gr=(200,0,2), csld=(200,0,3), z0=(0,4,15), z255=(255,4,15))
for name in sys.argv[1:]:
    m8_ffn.stamp_flush = mk(*S[name])
    open(f"m8_leak_{name}.s", "w").write(gen_m8.single(gen_m8.gen_m8(diag=True)))
```
